```python
import torch

def _softmax(x, axis=-1):
    return torch.softmax(x, dim=axis)

def _gelu(x):
    return torch.nn.functional.gelu(x, approximate='tanh')

def _silu(x):
    return torch.nn.functional.silu(x)

def _sigmoid(x):
    return torch.sigmoid(x)

def _layernorm(x, axis=-1, eps=1e-05):
    m = x.mean(dim=axis, keepdim=True)
    v = x.var(dim=axis, keepdim=True, unbiased=False)
    return (x - m) / torch.sqrt(v + eps)

def _scatter_add(tgt, idx, src, axis=0):
    return tgt.clone().index_add_(axis, idx, src)

def _segment_sum(src, seg, n):
    out = torch.zeros((n,) + src.shape[1:], dtype=src.dtype)
    return out.index_add_(0, seg, src)

def _pad(x, pw):
    flat = tuple((v for pair in reversed(pw) for v in pair))
    return torch.nn.functional.pad(x, flat)
kernel_name = 'adaLN_cond__spectral_gfnet__moe_arch_mod__prompt'

def setup_inputs():

    _w = lambda a: (lambda t: t.to(torch.bfloat16) if t.is_floating_point() else t)(torch.as_tensor(a))

    def _A_setup():
        B, S, D = (1, 2048, 640)
        Df = D // 2 + 1
        return {'x': _w((lambda *s: torch.randn(*s, dtype=torch.bfloat16) * 0.05)(B, S, D)), 'w_r': _w((lambda *s: torch.randn(*s, dtype=torch.bfloat16) * 3.2)(S, Df) * 0.02), 'w_i': _w((lambda *s: torch.randn(*s, dtype=torch.bfloat16) * 3.2)(S, Df) * 0.02)}
    _A_in = _A_setup()

    def _B_setup():
        B, S, D, F, C = (1, 2048, 640, 1728, 8)
        return {'x': _w((lambda *s: torch.randn(*s, dtype=torch.bfloat16) * 0.05)(B, S, D)), 'w_r': _w((lambda *s: torch.randn(*s, dtype=torch.bfloat16) * 0.2)(D)), 'w_gate': _w((lambda *s: torch.randn(*s, dtype=torch.bfloat16) * 0.2)(D, F)), 'w_up': _w((lambda *s: torch.randn(*s, dtype=torch.bfloat16) * 0.2)(D, F)), 'w_down': _w((lambda *s: torch.randn(*s, dtype=torch.bfloat16) * 0.2)(F, D))}
    _B_in = _B_setup()
    return {'A_x': _A_in['x'], 'A_w_r': _A_in['w_r'], 'A_w_i': _A_in['w_i'], 'B_x': _B_in['x'], 'B_w_r': _B_in['w_r'], 'B_w_gate': _B_in['w_gate'], 'B_w_up': _B_in['w_up'], 'B_w_down': _B_in['w_down'], 'c': _w((lambda *s: torch.randn(*s, dtype=torch.bfloat16) * 0.1)(1, 640) * 8.0), 'w_mod': _w((lambda *s: torch.randn(*s, dtype=torch.bfloat16) * 0.1)(640, 6 * 640) * 640 ** (-0.5) * 8.0)}

def reference(A_x, A_w_r, A_w_i, B_x, B_w_r, B_w_gate, B_w_up, B_w_down, c, w_mod):

    def _A_ref(x, w_r, w_i):
        B, S, D = x.shape
        X = (lambda x, axes=(-2, -1): torch.fft.rfft2(x.float(), dim=axes))(x, axes=(-2, -1))
        W = w_r + 1j * w_i
        X = X * W
        y = (lambda x, s, axes=(-2, -1): torch.fft.irfft2(x, s=s, dim=axes).to(torch.bfloat16))(X, (S, D), axes=(-2, -1))
        return y

    def _B_ref(x, w_r, w_gate, w_up, w_down):
        B, S, D = x.shape
        C = 8
        r = x @ w_r
        idx = torch.argsort(-r, axis=-1)[:, :C]
        idx_e = (lambda x, n, axis: torch.repeat_interleave(x, n, dim=axis))(idx.reshape(B, C, 1), D, axis=2)
        x_sel = (lambda x, i, axis: torch.take_along_dim(x, i, dim=axis))(x, idx_e, axis=1)
        g = _silu(x_sel @ w_gate)
        u = x_sel @ w_up
        y = g * u @ w_down
        r_sel = _sigmoid((lambda x, i, axis: torch.take_along_dim(x, i, dim=axis))(r, idx, axis=1))
        y = y * r_sel.reshape(B, C, 1)
        b_off = (torch.arange(B) * S).reshape(B, 1)
        flat_idx = (idx + b_off).reshape(B * C)
        zero = (x * 0.0).reshape(B * S, D)
        upd = _scatter_add(zero, flat_idx, y.reshape(B * C, D), axis=0)
        return x + upd.reshape(B, S, D)
    x = A_x
    mod = (_silu(c) @ w_mod).reshape(c.shape[0], 6, 1, -1)
    sa, ca, ga, sb, cb, gb = (mod[:, 0].clone(), mod[:, 1].clone(), mod[:, 2].clone(), mod[:, 3].clone(), mod[:, 4].clone(), mod[:, 5].clone())
    h = _layernorm(x, axis=-1) * (1 + ca) + sa
    x = x + ga * _A_ref(h, A_w_r, A_w_i)
    h = _layernorm(x, axis=-1) * (1 + cb) + sb
    x = x + gb * _B_ref(h, B_w_r, B_w_gate, B_w_up, B_w_down)
    return x
```

```python
import re, struct

def f2u(x):
    return struct.unpack('<I', struct.pack('<f', x))[0]
def fhex(x):
    return "0x%08x" % f2u(x)

_REG = re.compile(r'^(-|\|)?(abs\()?([vsa])(\d+|\[(\d+):(\d+)\])\)?\|?$')

def regs_of(tok):
    tok = tok.strip()
    if tok in ('vcc',):
        return {('s', 106), ('s', 107)}
    if tok == 'vcc_lo': return {('s', 106)}
    if tok == 'vcc_hi': return {('s', 107)}
    if tok == 'exec':
        return {('s', 126), ('s', 127)}
    if tok == 'm0':
        return {('s', 124)}
    m = _REG.match(tok)
    if not m:
        return set()
    k = m.group(3)
    if m.group(5) is not None:
        return {(k, i) for i in range(int(m.group(5)), int(m.group(6)) + 1)}
    return {(k, int(m.group(4)))}

TRANS = ('v_exp_f32', 'v_log_f32', 'v_rcp_f32', 'v_rsq_f32', 'v_sqrt_f32', 'v_sin_f32', 'v_cos_f32', 'v_rcp_iflag_f32')

class Ins:
    __slots__ = ('op', 'ops', 'mods', 'defs', 'uses', 'cls', 'srcc', 'ab', 'states', 'sdata')

class Asm:
    def __init__(self):
        self.lines = []
        self.hist = []
        self.nlabel = 0
        self.maxv = 0
        self.maxs = 0

    def raw(self, s):
        self.lines.append(s)

    def comment(self, s):
        self.lines.append("    ; " + s)

    def label(self, name):
        self.lines.append(name + ":")

    def newlabel(self, base="L"):
        self.nlabel += 1
        return f"{base}_{self.nlabel}"

    def reset_hist(self):
        self.hist = []

    def _classify(self, op, ops, mods):
        i = Ins(); i.op = op; i.ops = ops; i.mods = mods
        i.defs = set(); i.uses = set(); i.srcc = set(); i.ab = set(); i.states = 1; i.sdata = set()
        R = [regs_of(o) for o in ops]
        if op.startswith('v_mfma'):
            i.cls = 'mfma'
            i.defs = R[0]; i.ab = R[1] | R[2]; i.srcc = R[3]; i.uses = i.ab | i.srcc
        elif op.startswith('v_'):
            i.cls = 'valu'
            base = op.replace('_e32', '').replace('_e64', '').replace('_dpp', '').replace('_sdwa', '')
            if base in TRANS: i.cls = 'trans'
            if base in ('v_swap_b32', 'v_permlane32_swap_b32', 'v_permlane16_swap_b32'):
                i.defs = R[0] | R[1]; i.uses = R[0] | R[1]
            elif base in ('v_add_co_u32', 'v_sub_co_u32', 'v_subrev_co_u32', 'v_addc_co_u32', 'v_subb_co_u32', 'v_div_scale_f32', 'v_mad_u64_u32'):
                i.defs = R[0] | R[1]
                for r in R[2:]: i.uses |= r
            else:
                i.defs = R[0]
                for r in R[1:]: i.uses |= r
                if base in ('v_fmac_f32', 'v_pk_fmac_f16', 'v_dot2c_f32_bf16', 'v_dot2c_f32_f16', 'v_writelane_b32') or '_dpp' in op or 'd16' in op:
                    i.uses |= R[0]
                if base == 'v_cndmask_b32' and len(ops) == 3:
                    i.uses |= regs_of('vcc')
                if base.startswith('v_cmpx'):
                    i.defs |= regs_of('exec')
        elif op.startswith('buffer_') or op.startswith('global_') or op.startswith('flat_'):
            i.cls = 'vmem'
            if 'load' in op:
                i.defs = R[0]
                for r in R[1:]: i.uses |= r
                if 'd16' in op: i.uses |= R[0]
            else:
                for r in R: i.uses |= r
                if 'x3' in op or 'x4' in op:
                    i.sdata = R[0] if op.startswith('buffer_') else R[1]
                if 'atomic' in op and 'sc0' in mods:
                    i.defs = R[0]
        elif op.startswith('ds_'):
            i.cls = 'ds'
            if 'read' in op or 'permute' in op or 'swizzle' in op or 'rtn' in op:
                i.defs = R[0]
                for r in R[1:]: i.uses |= r
            else:
                for r in R: i.uses |= r
        elif op.startswith('s_'):
            i.cls = 'salu'
            if op == 's_nop':
                i.states = int(ops[0]) + 1
            elif op.startswith('s_cmp') or op.startswith('s_cbranch') or op in ('s_branch', 's_barrier', 's_waitcnt', 's_endpgm', 's_sleep', 's_setprio', 's_bitcmp1_b32', 's_bitcmp0_b32'):
                for r in R: i.uses |= r
            else:
                if R: i.defs = R[0]
                for r in R[1:]: i.uses |= r
                if 'saveexec' in op: i.defs |= regs_of('exec')
        else:
            raise ValueError("unknown op " + op)
        return i

    def _need(self, p, c):
        n = 0
        cbase = c.op
        pv = {r for r in p.defs if r[0] in 'va'}
        ps = {r for r in p.defs if r[0] == 's'}
        if p.cls in ('valu', 'trans'):
            if c.cls == 'mfma' and (pv & c.uses): n = max(n, 2)
            if c.cls in ('valu', 'trans'):
                if '_dpp' in cbase and (pv & c.uses): n = max(n, 2)
                if 'permlane' in cbase and (pv & c.uses): n = max(n, 2)
                if ('readlane' in cbase or 'readfirstlane' in cbase) and (pv & c.uses): n = max(n, 1)
                if ps & c.uses:
                    n = max(n, 2)
                    if 'readlane' in cbase or 'writelane' in cbase: n = max(n, 4)
                    if 'div_fmas' in cbase: n = max(n, 4)
                if p.cls == 'trans' and c.cls != 'trans' and (pv & (c.uses | c.defs)): n = max(n, 1)
                if ('sdwa' in p.op or 'op_sel' in p.mods and not p.op.startswith('v_pk')) and (pv & (c.uses | c.defs)): n = max(n, 1)
            if c.cls == 'trans' and p.cls == 'trans': pass
            if c.cls == 'vmem' and (ps & c.uses): n = max(n, 5)
            if c.cls == 'salu' and (ps & c.uses): n = max(n, 2)
            if c.cls == 'mfma' and (regs_of('exec') & ps): n = max(n, 4)
            if p.cls == 'trans' and c.cls in ('vmem', 'ds', 'mfma') and (pv & c.uses): n = max(n, 2 if c.cls == 'mfma' else 1)
        if p.cls == 'mfma':
            passes = 8 if '32x32' in p.op else 4
            big = {4: 8, 8: 12}[passes]
            if c.cls == 'mfma':
                if pv & c.ab: n = max(n, big)
                if pv & c.srcc:
                    if pv == c.srcc and (('32x32' in p.op) == ('32x32' in c.op)): pass
                    else: n = max(n, {4: 6, 8: 10}[passes])
                elif pv & c.defs:
                    n = max(n, big)
            elif c.cls in ('valu', 'trans'):
                if pv & (c.uses | c.defs): n = max(n, big)
                if p.srcc & c.defs: n = max(n, {4: 3, 8: 7}[passes])
            elif c.cls in ('vmem', 'ds'):
                if pv & (c.uses | c.defs): n = max(n, big)
        if p.cls == 'vmem' and p.sdata:
            if p.sdata & c.defs: n = max(n, 2)
        if p.cls == 'salu' and ('s', 124) in p.defs and c.cls in ('vmem', 'ds'):
            n = max(n, 1)
        return n

    def __call__(self, op, *ops, mods=""):
        ops = [str(o) for o in ops]
        c = self._classify(op, ops, mods)
        dist = 0
        pad = 0
        for p in reversed(self.hist):
            need = self._need(p, c)
            if need > dist:
                pad = max(pad, need - dist)
            dist += p.states
            if dist >= 24: break
        while pad > 0:
            k = min(pad, 16)
            self.lines.append(f"    s_nop {k-1}")
            nop = self._classify('s_nop', [str(k - 1)], "")
            self.hist.append(nop)
            pad -= k
        for r in c.defs | c.uses:
            if r[0] == 'v': self.maxv = max(self.maxv, r[1] + 1)
            if r[0] == 's' and r[1] < 102: self.maxs = max(self.maxs, r[1] + 1)
        self.hist.append(c)
        if len(self.hist) > 40: self.hist = self.hist[-40:]
        s = "    " + op + (" " + ", ".join(ops) if ops else "") + ((" " + mods) if mods else "")
        self.lines.append(s)

def v(n, cnt=1):
    return f"v{n}" if cnt == 1 else f"v[{n}:{n+cnt-1}]"
def s(n, cnt=1):
    return f"s{n}" if cnt == 1 else f"s[{n}:{n+cnt-1}]"

class VAlloc:
    def __init__(self, start=1):
        self.next = start
    def __call__(self, cnt=1, align=None):
        if align is None:
            align = 1 if cnt == 1 else 2
        self.next = (self.next + align - 1) // align * align
        r = self.next
        self.next += cnt
        return r
```

```python
import math
from asmlib import Asm, VAlloc, v, s, fhex, f2u
from gen_rest import sincos_int

G = None

def cmul_quads(A, orr, oi, re, im, tr, ti, conj=False):
    for h in (0, 2):
        A('v_pk_mul_f32', v(orr + h, 2), v(re + h, 2), v(tr + h, 2))
        A('v_pk_mul_f32', v(oi + h, 2), v(im + h, 2), v(tr + h, 2))
    for h in (0, 2):
        neg = "neg_lo:[1,0,0] neg_hi:[1,0,0]"
        A('v_pk_fma_f32', v(orr + h, 2), v(im + h, 2), v(ti + h, 2), v(orr + h, 2), mods="" if conj else neg)
        A('v_pk_fma_f32', v(oi + h, 2), v(re + h, 2), v(ti + h, 2), v(oi + h, 2), mods=neg if conj else "")

def gen_k2():
    A = Asm()
    G.load_ptrs(A)
    A('v_and_b32', v(1), 63, v(0))
    A('v_lshrrev_b32', v(2), 6, v(0))
    A('v_readfirstlane_b32', s(3), v(2))
    A('s_mul_i32', s(4), s(2), 5)
    A('s_add_u32', s(4), s(4), s(3))
    A('s_cmp_gt_u32', s(2), 256)
    A('s_cbranch_scc1', 'K2_END')
    A('s_cmp_gt_u32', s(4), 1280)
    A('s_cbranch_scc1', 'K2_END')
    VN, VG = 2, 3
    A('v_and_b32', v(VN), 15, v(1))
    A('v_lshrrev_b32', v(VG), 4, v(1))
    A('v_lshl_add_u32', v(4), v(VG), 6, v(VN))
    A('s_movk_i32', s(5), 10240)
    A('v_mul_u32_u24', v(5), s(5), v(4))
    A('v_lshlrev_b32', v(6), 5, v(1))
    A('s_and_b32', s(6), s(2), 63)
    A('s_lshr_b32', s(7), s(2), 6)
    A('s_cmp_ge_u32', s(7), 3)
    A('s_cselect_b32', s(15), 1, 0)
    A('s_waitcnt', 'lgkmcnt(0)')
    G.stamp(A, 0)
    G.srd(A, 44, G.P_WS, G.WS_BYTES)
    A('s_load_dword', s(14), s(G.P_WS, 2), G.WS_SCAL + 4)
    WE = 16
    A('s_lshl_b32', s(10), s(4), 12)
    A('s_add_u32', s(10), s(10), G.WS_WE)
    OP = 8
    A('s_cmp_eq_u32', s(15), 1)
    A('s_cbranch_scc1', 'K2_T0')
    A('s_and_b32', s(8), s(6), 3)
    A('s_lshr_b32', s(9), s(6), 2)
    A('s_lshl_b32', s(9), s(9), 4)
    A('s_add_u32', s(8), s(8), s(9))
    A('s_lshl_b32', s(9), s(7), 2)
    A('s_add_u32', s(8), s(8), s(9))
    A('s_add_u32', s(8), s(8), 4)
    A('s_mul_i32', s(8), s(8), 40)
    A('s_lshl_b32', s(9), s(3), 3)
    A('s_add_u32', s(8), s(8), s(9))
    A('s_add_u32', s(11), s(8), G.WS_Z1)
    for c, r in ((0, 0), (1, 4), (2, 2), (3, 6)):
        A('buffer_load_dwordx2', v(OP + r, 2), v(5), s(44, 4), s(11), mods="offen")
        if c < 3: A('s_add_u32', s(11), s(11), 163840)
    A('s_branch', 'K2_C')
    A.label('K2_T0')
    A('s_cmp_eq_u32', s(7), 4)
    A('s_cselect_b32', s(12), 5, s(3))
    A('s_and_b32', s(8), s(6), 3)
    A('s_lshr_b32', s(9), s(6), 2)
    A('s_lshl_b32', s(9), s(9), 4)
    A('s_add_u32', s(8), s(8), s(9))
    A('s_mul_i32', s(8), s(8), 10)
    A('s_add_u32', s(8), s(8), s(12))
    A('s_lshl_b32', s(8), s(8), 2)
    A('s_sub_u32', s(13), 64, s(6))
    A('s_and_b32', s(13), s(13), 63)
    A('s_and_b32', s(9), s(13), 3)
    A('s_lshr_b32', s(13), s(13), 2)
    A('s_lshl_b32', s(13), s(13), 4)
    A('s_add_u32', s(9), s(9), s(13))
    A('s_mul_i32', s(9), s(9), 10)
    A('s_sub_u32', s(13), 10, s(12))
    A('s_cmp_eq_u32', s(12), 0)
    A('s_cselect_b32', s(13), 0, s(13))
    A('s_sub_u32', s(12), 9, s(12))
    A('s_cmp_eq_u32', s(6), 0)
    A('s_cselect_b32', s(12), s(13), s(12))
    A('s_add_u32', s(9), s(9), s(12))
    A('s_lshl_b32', s(9), s(9), 2)
    A('s_add_u32', s(11), s(8), G.WS_Z1)
    A('s_add_u32', s(12), s(9), G.WS_Z1)
    for c in range(4):
        A('buffer_load_dword', v(OP + c), v(5), s(44, 4), s(11), mods="offen")
        A('buffer_load_dword', v(OP + 4 + c), v(5), s(44, 4), s(12), mods="offen")
        if c < 3:
            A('s_add_u32', s(11), s(11), 163840)
            A('s_add_u32', s(12), s(12), 163840)
    A.label('K2_C')
    A.reset_hist()
    for P in range(2):
        A('buffer_load_dwordx4', v(WE + 8 * P, 4), v(6), s(44, 4), s(10), mods=f"offen offset:{2048*P}")
        A('buffer_load_dwordx4', v(WE + 8 * P + 4, 4), v(6), s(44, 4), s(10), mods=f"offen offset:{2048*P+16}")
    FR, FI, IR, II = 32, 36, 40, 44
    TR, TI = 48, 52
    A('v_lshlrev_b32', v(7), 2, v(VG))
    for c in range(4):
        A('v_add_u32', v(64), c, v(7))
        A('v_mul_u32_u24', v(64), v(64), v(VN))
        A('v_and_b32', v(65), 15, v(64))
        sincos_int(A, 66, 67, 65, 16, 65)
        sincos_int(A, TR + c, TI + c, 64, 256, 64)
        A('v_mul_f32', v(66), fhex(0.25), v(66))
        A('v_mul_f32', v(67), fhex(0.25), v(67))
        A('v_sub_f32', v(TI + c), 0, v(TI + c))
        A('v_cvt_pk_f16_f32', v(FR + c), v(66), v(67))
        A('v_cvt_pk_f16_f32', v(FI + c), '-' + v(67), v(66))
        A('v_cvt_pk_f16_f32', v(IR + c), v(66), '-' + v(67))
        A('v_cvt_pk_f16_f32', v(II + c), v(67), v(66))
    A('s_waitcnt', 'lgkmcnt(0)')
    A('s_add_u32', s(14), s(14), s(15))
    A('s_sub_u32', s(14), 252, s(14))
    A('s_max_i32', s(14), s(14), 1)
    A('s_lshl_b32', s(14), s(14), 23)
    UR, UI = 56, 60
    D = 64
    O = 80
    G.stamp(A, 1)
    A('s_cmp_eq_u32', s(15), 1)
    A('s_cbranch_scc1', 'K2_T0PRE')
    A('s_waitcnt', 'vmcnt(4)')
    A('v_swap_b32', v(OP + 1), v(OP + 4))
    A('v_swap_b32', v(OP + 3), v(OP + 6))
    A('s_branch', 'K2_MAIN')
    A.label('K2_T0PRE')
    A.reset_hist()
    for c in range(4):
        A('v_add_u32', v(64), 16 * c, v(4))
        sincos_int(A, UR + c, UI + c, 64, 512, 64)
        A('v_sub_f32', v(UI + c), 0, v(UI + c))
    A('s_waitcnt', 'vmcnt(4)')
    for c in range(4):
        a, b = v(OP + c), v(OP + 4 + c)
        A('v_fma_mix_f32', v(D + c), a, 1.0, b, mods="op_sel_hi:[1,0,1]")
        A('v_fma_mix_f32', v(D + 4 + c), a, 1.0, '-' + b, mods="op_sel:[1,0,1] op_sel_hi:[1,0,1]")
        A('v_fma_mix_f32', v(D + 8 + c), a, 1.0, b, mods="op_sel:[1,0,1] op_sel_hi:[1,0,1]")
        A('v_fma_mix_f32', v(D + 12 + c), a, -1.0, b, mods="op_sel_hi:[1,0,1]")
    cmul_quads(A, O, O + 4, D + 8, D + 12, UR, UI)
    for c in range(4):
        A('v_cvt_pk_f16_f32', v(OP + c), v(D + c), v(D + 4 + c))
        A('v_cvt_pk_f16_f32', v(OP + 4 + c), v(O + c), v(O + 4 + c))
    A.label('K2_MAIN')
    A.reset_hist()
    G.stamp(A, 2)
    A('s_nop', 1)
    def mf(P, dataA, CR, CI):
        op = v(OP + 4 * P, 4)
        for (dst, C) in ((D + 8 * P, CR), (D + 8 * P + 4, CI)):
            if dataA: A('v_mfma_f32_16x16x32_f16', v(dst, 4), op, v(C, 4), 0)
            else: A('v_mfma_f32_16x16x32_f16', v(dst, 4), v(C, 4), op, 0)
    def cvt(P):
        for c in range(4):
            A('v_cvt_pk_f16_f32', v(OP + 4 * P + c), v(O + 8 * P + c), v(O + 8 * P + 4 + c))
    mf(0, True, FR, FI); mf(1, True, FR, FI)
    for P in range(2):
        cmul_quads(A, O + 8 * P, O + 8 * P + 4, D + 8 * P, D + 8 * P + 4, TR, TI)
        cvt(P)
        mf(P, False, FR, FI)
    A('s_mov_b32', s(12), s(14))
    A('s_mov_b32', s(13), s(14))
    G.stamp(A, 3)
    A('s_waitcnt', 'vmcnt(0)')
    G.stamp(A, 4)
    for r in range(0, 16, 2):
        A('v_pk_mul_f32', v(WE + r, 2), v(WE + r, 2), s(12, 2))
    for P in range(2):
        cmul_quads(A, O + 8 * P, O + 8 * P + 4, D + 8 * P, D + 8 * P + 4, WE + 8 * P, WE + 8 * P + 4)
        cvt(P)
        mf(P, True, IR, II)
    for P in range(2):
        cmul_quads(A, O + 8 * P, O + 8 * P + 4, D + 8 * P, D + 8 * P + 4, TR, TI, conj=True)
        cvt(P)
        mf(P, False, IR, II)
    A('s_add_u32', s(11), s(8), G.WS_Z2)
    A('s_cmp_eq_u32', s(15), 1)
    A('s_cbranch_scc1', 'K2_T0POST')
    A('s_nop', 7)
    for c in range(4):
        A('v_cvt_pk_f16_f32', v(O + 2 * c), v(D + c), v(D + 4 + c))
        A('v_cvt_pk_f16_f32', v(O + 2 * c + 1), v(D + 8 + c), v(D + 12 + c))
        A('buffer_store_dwordx2', v(O + 2 * c, 2), v(5), s(44, 4), s(11), mods="offen")
        if c < 3: A('s_add_u32', s(11), s(11), 163840)
    G.stamp(A, 5)
    if G.PROF: A('s_waitcnt', 'vmcnt(0)')
    G.stamp_flush(A, 2, 6)
    A('s_endpgm')
    A.label('K2_T0POST')
    A.reset_hist()
    A('s_nop', 7)
    A('s_add_u32', s(12), s(9), G.WS_Z2)
    cmul_quads(A, O, O + 4, D + 8, D + 12, UR, UI, conj=True)
    T = 16
    for h in (0, 2):
        A('v_pk_add_f32', v(T + h, 2), v(D + h, 2), v(O + 4 + h, 2), mods="neg_lo:[0,1] neg_hi:[0,1]")
        A('v_pk_add_f32', v(T + 4 + h, 2), v(D + 4 + h, 2), v(O + h, 2))
        A('v_pk_add_f32', v(T + 8 + h, 2), v(D + h, 2), v(O + 4 + h, 2))
        A('v_pk_add_f32', v(T + 12 + h, 2), v(O + h, 2), v(D + 4 + h, 2), mods="neg_lo:[0,1] neg_hi:[0,1]")
    for c in range(4):
        A('v_cvt_pk_f16_f32', v(OP + c), v(T + c), v(T + 4 + c))
        A('v_cvt_pk_f16_f32', v(OP + 4 + c), v(T + 8 + c), v(T + 12 + c))
    for c in range(4):
        A('buffer_store_dword', v(OP + 4 + c), v(5), s(44, 4), s(12), mods="offen")
        A('buffer_store_dword', v(OP + c), v(5), s(44, 4), s(11), mods="offen")
        if c < 3:
            A('s_add_u32', s(11), s(11), 163840)
            A('s_add_u32', s(12), s(12), 163840)
    G.stamp(A, 5)
    if G.PROF: A('s_waitcnt', 'vmcnt(0)')
    G.stamp_flush(A, 2, 6)
    A.label('K2_END')
    A('s_endpgm')
    G.finish(A, 'k2_kernel', 257, 320, 0)

def gen_all():
    gen_k2()
    try:
        import gen_k3
        gen_k3.G = G
        gen_k3.gen_all()
    except ImportError:
        pass
```

```python
import math
from asmlib import Asm, VAlloc, v, s, fhex, f2u
from gen_rest import sincos_int, dft5, dft5_consts, cmul
from gen_k2 import cmul_quads

G = None
WS_STAT2 = 49152
WS_SEL = 81920
WS_A = 98304

def rnd(A, d, a):
    A('v_cvt_pk_bf16_f32', v(d), 0, v(a))

def reduce63(A, op, regs):
    G.row_reduce(A, op, regs)
    for r in regs: A(op + '_dpp', v(r), v(r), v(r), mods="row_bcast:15 row_mask:0xa bank_mask:0xf")
    for r in regs: A(op + '_dpp', v(r), v(r), v(r), mods="row_bcast:31 row_mask:0xc bank_mask:0xf")

def h2_chain(A, X, H, sst, C1, SB, n=5):
    for p in range(n): A('v_pk_add_f32', v(H + 2 * p, 2), v(X + 2 * p, 2), s(sst, 2), mods="op_sel_hi:[1,0] neg_lo:[0,1] neg_hi:[0,1]")
    for r in range(2 * n): rnd(A, H + r, H + r)
    for p in range(n): A('v_pk_mul_f32', v(H + 2 * p, 2), v(H + 2 * p, 2), s(sst, 2), mods="op_sel:[0,1] op_sel_hi:[1,1]")
    for r in range(2 * n): rnd(A, H + r, H + r)
    for p in range(n): A('v_pk_mul_f32', v(H + 2 * p, 2), v(H + 2 * p, 2), v(C1 + 2 * p, 2))
    for r in range(2 * n): rnd(A, H + r, H + r)
    for p in range(n): A('v_pk_add_f32', v(H + 2 * p, 2), v(H + 2 * p, 2), v(SB + 2 * p, 2))

def load10(A, d, voff, srd, soff, off):
    A('buffer_load_dwordx4', v(d, 4), v(voff), s(srd, 4), soff, mods=f"offen offset:{off}")
    A('buffer_load_dwordx4', v(d + 4, 4), v(voff), s(srd, 4), soff, mods=f"offen offset:{off+16}")
    A('buffer_load_dwordx2', v(d + 8, 2), v(voff), s(srd, 4), soff, mods=f"offen offset:{off+32}")
def load5(A, d, voff, srd, soff, off=0):
    A('buffer_load_dwordx4', v(d, 4), v(voff), s(srd, 4), soff, mods=f"offen offset:{off}")
    A('buffer_load_dword', v(d + 4), v(voff), s(srd, 4), soff, mods=f"offen offset:{off+16}")
def store5(A, d, voff, srd, soff, off=0):
    A('buffer_store_dwordx4', v(d, 4), v(voff), s(srd, 4), soff, mods=f"offen offset:{off}")
    A('buffer_store_dword', v(d + 4), v(voff), s(srd, 4), soff, mods=f"offen offset:{off+16}")
def unpack(A, d, src, n):
    for p in range(n):
        A('v_lshlrev_b32', v(d + 2 * p), 16, v(src + p))
        A('v_and_b32', v(d + 2 * p + 1), '0xffff0000', v(src + p))

L3_Y = 12800

def gen_k3():
    A = Asm()
    G.load_ptrs(A)
    A('s_cmp_ge_u32', s(2), 256)
    A('s_cbranch_scc1', 'K3_END')
    A('v_and_b32', v(1), 63, v(0))
    A('v_lshrrev_b32', v(2), 6, v(0))
    A('v_readfirstlane_b32', s(3), v(2))
    A('v_and_b32', v(3), 255, v(0))
    A('v_mul_u32_u24', v(4), 40, v(3))
    A('v_mul_u32_u24', v(5), 20, v(1))
    A('v_lshlrev_b32', v(6), 1, v(5))
    A('s_mul_i32', s(4), s(2), 10240)
    A('s_add_u32', s(4), s(4), G.WS_Z2)
    A('s_lshl_b32', s(5), s(3), 8)
    A('s_add_u32', s(5), s(5), s(2))
    A('s_mul_i32', s(6), s(5), 1280)
    A('s_waitcnt', 'lgkmcnt(0)')
    G.stamp(A, 0)
    G.srd(A, 44, G.P_WS, G.WS_BYTES)
    G.srd(A, 48, G.P_X, 2048 * 1280)
    G.srd(A, 52, G.P_BWR, 1280)
    G.srd(A, 56, G.P_OUT, 2048 * 1280)
    A('s_load_dwordx2', s(8, 2), s(G.P_WS, 2), G.WS_SCAL)
    Z, X, WR, GA, SB, C1, GB = 8, 18, 24, 30, 40, 50, 60
    load10(A, Z, 4, 44, s(4), 0)
    load5(A, X, 5, 48, s(6))
    A('s_movk_i32', s(7), 2560 * 2)
    load10(A, GA, 6, 44, s(7), G.WS_MOD)
    load10(A, SB, 6, 44, s(7), G.WS_MOD + 2560)
    A('s_movk_i32', s(7), 2560 * 4)
    load10(A, C1, 6, 44, s(7), G.WS_MOD)
    load10(A, GB, 6, 44, s(7), G.WS_MOD + 2560)
    load5(A, WR, 5, 52, 0)
    TW2 = 70
    A('s_cmp_ge_u32', s(3), 4)
    A('s_cselect_b32', s(10), -1.0, 1.0)
    E0, E1 = (0, 6, 2, 8, 4), (5, 1, 7, 3, 9)
    for k2 in range(5):
        A('s_mov_b32', s(60 + k2), fhex(E0[k2] / 160.0))
        A('s_cmov_b32', s(60 + k2), fhex(E1[k2] / 160.0))
    A('s_cselect_b32', s(11), 5 * 1280, 0)
    A('s_mov_b32', s(12), fhex(1 / math.sqrt(10)))
    A('v_lshrrev_b32', v(7), 4, v(3))
    A('v_cvt_f32_u32', v(112), v(7))
    for k2 in range(5):
        A('v_mul_f32', v(113 + k2), s(60 + k2), v(112))
    for k2 in range(5):
        A('v_cos_f32', v(TW2 + 2 * k2), v(113 + k2))
        A('v_sin_f32', v(TW2 + 2 * k2 + 1), v(113 + k2))
    for k2 in range(5):
        A('v_pk_mul_f32', v(TW2 + 2 * k2, 2), v(TW2 + 2 * k2, 2), s(12, 2), mods="op_sel_hi:[1,0]")
    A('v_and_b32', v(112), 15, v(3))
    A('v_mul_u32_u24', v(112), 80, v(112))
    A('v_lshl_add_u32', v(112), v(7), 2, v(112))
    A('v_add_u32', v(2), s(11), v(112))
    A('v_subrev_u32', v(3), s(11), v(112))
    dft5_consts(A, 70, 72)
    VN, VG = 4, 7
    A('v_and_b32', v(VN), 15, v(1))
    A('v_lshrrev_b32', v(VG), 4, v(1))
    IR, II, TW1, CA = 80, 84, 88, 104
    A('s_cmp_ge_u32', s(3), 5)
    A('s_cbranch_scc1', 'K3_P1')
    A('v_lshlrev_b32', v(112), 2, v(VG))
    for c in range(4):
        A('v_add_u32', v(113), c, v(112))
        A('v_mul_u32_u24', v(113), v(113), v(VN))
        A('v_and_b32', v(113), 15, v(113))
        sincos_int(A, 114, 115, 113, 16, 113)
        A('v_mul_f32', v(114), fhex(0.25), v(114))
        A('v_mul_f32', v(115), fhex(0.25), v(115))
        A('v_cvt_pk_f16_f32', v(IR + c), v(114), '-' + v(115))
        A('v_cvt_pk_f16_f32', v(II + c), v(115), v(114))
    A('s_lshl_b32', s(13), s(3), 1)
    A('v_mad_u32_u24', v(112), v(VN), 10, s(13))
    A('v_cvt_f32_u32', v(112), v(112))
    A('v_add_f32', v(113), 1.0, v(112))
    for tl in range(2):
        A('v_mov_b32', v(TW1 + 8 * tl), 1.0)
        A('v_mov_b32', v(TW1 + 8 * tl + 4), 0)
        for i in range(1, 4):
            A('v_mul_f32', v(114), fhex(i / 640.0), v(112 + tl))
            A('v_cos_f32', v(TW1 + 8 * tl + i), v(114))
            A('v_sin_f32', v(TW1 + 8 * tl + 4 + i), v(114))
    sA = 1 / math.sqrt(32)
    A('v_and_b32', v(112), 3, v(VN))
    A('v_lshl_add_u32', v(113), v(112), 8, s(2))
    A('v_mul_u32_u24', v(113), v(113), v(VG))
    A('v_and_b32', v(112), 1, v(112))
    A('v_lshlrev_b32', v(112), 9, v(112))
    A('v_add_u32', v(112), -256, v(112))
    A('v_cmp_eq_u32', 'vcc', 0, v(VG))
    A('v_cndmask_b32', v(113), v(113), v(112), 'vcc')
    A('v_mov_b32', v(116), fhex(2 * sA))
    A('v_mov_b32', v(117), fhex(math.sqrt(2) * sA))
    A('v_cndmask_b32', v(116), v(116), v(117), 'vcc')
    A('v_lshrrev_b32', v(112), 2, v(VN))
    A('v_lshlrev_b32', v(112), 9, v(112))
    A('v_and_b32', v(117), 1, v(VG))
    A('v_mul_u32_u24', v(117), '0x8000', v(117))
    A('v_lshl_or_b32', v(117), v(117), 16, v(117))
    for ka in range(4):
        A('v_and_b32', v(118), 2047, v(113))
        if ka < 3: A('v_add_u32', v(113), v(113), v(112))
        sincos_int(A, 114, 115, 118, 2048, 118)
        A('v_mul_f32', v(114), v(114), v(116))
        A('v_mul_f32', v(115), v(115), v(116))
        A('v_cvt_pk_f16_f32', v(CA + ka), v(114), '-' + v(115))
        A('v_xor_b32', v(CA + 4 + ka), v(CA + ka), v(117))
    A.label('K3_P1')
    A.reset_hist()
    A('s_nop', 1)
    A('v_mul_u32_u24', v(112), 80, v(VN))
    A('v_lshl_add_u32', v(112), v(VG), 4, v(112))
    A('s_mul_i32', s(13), s(3), 2560)
    A('v_add_u32', v(6), s(13), v(112))
    A('v_mul_u32_u24', v(112), 20, v(VN))
    A('s_movk_i32', s(13), 320)
    A('v_mad_u32_u24', v(112), v(VG), s(13), v(112))
    A('s_lshl_b32', s(13), s(3), 2)
    A('v_add_u32', v(7), s(13), v(112))
    A('s_mul_i32', s(13), s(3), 1280)
    A('v_add_u32', v(4), s(13), v(5))
    G.stamp(A, 1)
    A('s_waitcnt', 'vmcnt(16)')
    G.stamp(A, 2)
    U, OUT, TMP = 112, 122, 132
    for e2 in range(5):
        a, b = v(Z + (2 * e2) % 10), v(Z + (5 + 2 * e2) % 10)
        A('v_fma_mix_f32', v(U + 2 * e2), b, s(10), a, mods="op_sel_hi:[1,0,1]")
        A('v_fma_mix_f32', v(U + 2 * e2 + 1), b, s(10), a, mods="op_sel:[1,0,1] op_sel_hi:[1,0,1]")
    dft5(A, [U + 2 * i for i in range(5)], [OUT + 2 * i for i in range(5)], [TMP + 2 * i for i in range(6)], 70, 72, True)
    for k2 in range(5):
        cmul(A, U + 2 * k2, OUT + 2 * k2, TW2 + 2 * k2, U + 2 * k2)
    for k2 in range(5):
        A('v_cvt_pk_f16_f32', v(Z + k2), v(U + 2 * k2), v(U + 2 * k2 + 1))
    A('ds_write2st64_b32', v(2), v(Z + 0), v(Z + 2), mods="offset0:0 offset1:10")
    A('ds_write2st64_b32', v(3), v(Z + 1), v(Z + 3), mods="offset0:30 offset1:40")
    A('ds_write_b32', v(2), v(Z + 4), mods=f"offset:{4*1280}")
    XF, WF = 140, 150
    A('s_waitcnt', 'vmcnt(0) lgkmcnt(0)')
    G.stamp(A, 3)
    A('s_barrier')
    G.stamp(A, 4)
    A('s_cmp_ge_u32', s(3), 5)
    A('s_cbranch_scc1', 'K3_P2E')
    OPD, D, O = 8, 112, 128
    A('ds_read_b128', v(OPD, 4), v(6))
    A('ds_read_b128', v(OPD + 4, 4), v(6), mods="offset:1280")
    for tl in range(2):
        A('s_waitcnt', f'lgkmcnt({1-tl})')
        A('v_mfma_f32_16x16x32_f16', v(D + 8 * tl, 4), v(OPD + 4 * tl, 4), v(IR, 4), 0)
        A('v_mfma_f32_16x16x32_f16', v(D + 8 * tl + 4, 4), v(OPD + 4 * tl, 4), v(II, 4), 0)
    Y = 70
    for tl in range(2):
        cmul_quads(A, O, O + 4, D + 8 * tl, D + 8 * tl + 4, TW1 + 8 * tl, TW1 + 8 * tl + 4)
        for i in range(4):
            A('v_cvt_pk_f16_f32', v(OPD + 4 * tl + i), v(O + i), v(O + 4 + i))
        for mu in range(2):
            A('v_mfma_f32_16x16x32_f16', v(Y + 8 * tl + 4 * mu, 4), v(CA + 4 * mu, 4), v(OPD + 4 * tl, 4), 0)
    for t in range(8):
        A('v_cvt_pk_bf16_f32', v(D + t), v(Y + t), v(Y + 8 + t))
    for t in range(0, 8, 2):
        A('ds_write2st64_b32', v(7), v(D + t), v(D + t + 1), mods=f"offset0:{50+5*t} offset1:{55+5*t}")
    A.label('K3_P2E')
    A.reset_hist()
    A('s_nop', 1)
    unpack(A, XF, X, 5)
    unpack(A, WF, WR, 5)
    A('s_add_u32', s(8), s(8), s(9))
    A('s_sub_u32', s(8), s(8), 254)
    for r in range(10):
        A('v_ldexp_f32', v(GA + r), v(GA + r), s(8))
    A('s_waitcnt', 'lgkmcnt(0)')
    G.stamp(A, 5)
    A('s_barrier')
    G.stamp(A, 6)
    YP = 8
    A('ds_read2_b32', v(YP, 2), v(4), mods=f"offset0:0 offset1:1")if False else None
    A('v_add_u32', v(4), L3_Y, v(4))
    A('ds_read2_b32', v(YP, 2), v(4), mods="offset0:0 offset1:1")
    A('ds_read2_b32', v(YP + 2, 2), v(4), mods="offset0:2 offset1:3")
    A('ds_read_b32', v(YP + 4), v(4), mods="offset:16")
    A('s_waitcnt', 'lgkmcnt(0)')
    T = 112
    unpack(A, T, YP, 5)
    for p in range(5): A('v_pk_mul_f32', v(T + 2 * p, 2), v(T + 2 * p, 2), v(GA + 2 * p, 2))
    for r in range(10): rnd(A, T + r, T + r)
    for p in range(5): A('v_pk_add_f32', v(T + 2 * p, 2), v(T + 2 * p, 2), v(XF + 2 * p, 2))
    X1P = 8
    for p in range(5): A('v_cvt_pk_bf16_f32', v(X1P + p), v(T + 2 * p), v(T + 2 * p + 1))
    unpack(A, XF, X1P, 5)
    A('s_add_u32', s(7), s(6), G.WS_X1)
    store5(A, X1P, 5, 44, s(7))
    A('v_pk_add_f32', v(T, 2), v(XF, 2), v(XF + 2, 2))
    A('v_pk_add_f32', v(T + 2, 2), v(XF + 4, 2), v(XF + 6, 2))
    A('v_pk_add_f32', v(T, 2), v(T, 2), v(XF + 8, 2))
    A('v_pk_add_f32', v(T, 2), v(T, 2), v(T + 2, 2))
    A('v_add_f32', v(16), v(T), v(T + 1))
    reduce63(A, 'v_add_f32', [16])
    A('v_mul_f32', v(16), fhex(1.0 / 640), v(16))
    A('v_readlane_b32', s(12), v(16), 63)
    for p in range(5): A('v_pk_add_f32', v(T + 2 * p, 2), v(XF + 2 * p, 2), s(12, 2), mods="op_sel_hi:[1,0] neg_lo:[0,1] neg_hi:[0,1]")
    A('v_pk_mul_f32', v(T + 10, 2), v(T, 2), v(T, 2))
    A('v_pk_mul_f32', v(T + 12, 2), v(T + 2, 2), v(T + 2, 2))
    A('v_pk_fma_f32', v(T + 10, 2), v(T + 4, 2), v(T + 4, 2), v(T + 10, 2))
    A('v_pk_fma_f32', v(T + 12, 2), v(T + 6, 2), v(T + 6, 2), v(T + 12, 2))
    A('v_pk_fma_f32', v(T + 10, 2), v(T + 8, 2), v(T + 8, 2), v(T + 10, 2))
    A('v_pk_add_f32', v(T + 10, 2), v(T + 10, 2), v(T + 12, 2))
    A('v_add_f32', v(17), v(T + 10), v(T + 11))
    rnd(A, 16, 16)
    reduce63(A, 'v_add_f32', [17])
    A('v_mul_f32', v(17), fhex(1.0 / 640), v(17))
    rnd(A, 17, 17)
    A('v_add_f32', v(17), fhex(1e-5), v(17))
    rnd(A, 17, 17)
    A('v_sqrt_f32', v(17), v(17))
    rnd(A, 17, 17)
    A('v_rcp_f32', v(17), v(17))
    A('v_readlane_b32', s(12), v(16), 63)
    A('v_readlane_b32', s(13), v(17), 63)
    H = 112
    h2_chain(A, XF, H, 12, C1, SB)
    for r in range(10): rnd(A, H + r, H + r)
    A('v_pk_mul_f32', v(124, 2), v(H, 2), v(WF, 2))
    A('v_pk_mul_f32', v(126, 2), v(H + 2, 2), v(WF + 2, 2))
    A('v_pk_fma_f32', v(124, 2), v(H + 4, 2), v(WF + 4, 2), v(124, 2))
    A('v_pk_fma_f32', v(126, 2), v(H + 6, 2), v(WF + 6, 2), v(126, 2))
    A('v_pk_fma_f32', v(124, 2), v(H + 8, 2), v(WF + 8, 2), v(124, 2))
    A('v_pk_add_f32', v(124, 2), v(124, 2), v(126, 2))
    A('v_add_f32', v(18), v(124), v(125))
    for p in range(5): A('v_pk_mul_f32', v(H + 2 * p, 2), v(H + 2 * p, 2), v(GB + 2 * p, 2))
    for r in range(10): rnd(A, H + r, H + r)
    for p in range(5): A('v_pk_add_f32', v(H + 2 * p, 2), v(H + 2 * p, 2), v(XF + 2 * p, 2))
    for p in range(5): A('v_cvt_pk_bf16_f32', v(24 + p), v(H + 2 * p), v(H + 2 * p + 1))
    store5(A, 24, 5, 56, s(6))
    reduce63(A, 'v_add_f32', [18])
    rnd(A, 18, 18)
    A('v_ashrrev_i32', v(19), 31, v(18))
    A('v_or_b32', v(19), '0x80000000', v(19))
    A('v_xor_b32', v(18), v(18), v(19))
    A('v_and_b32', v(18), '0xffff0000', v(18))
    A('s_sub_u32', s(7), 2047, s(5))
    A('v_or_b32', v(18), s(7), v(18))
    A('s_mov_b64', 'exec', '0x8000000000000000') if False else None
    A('v_cmp_eq_u32', 'vcc', 63, v(1))
    A('s_mov_b64', 'exec', 'vcc')
    A('v_mov_b32', v(19), 0)
    A('s_lshl_b32', s(7), s(5), 2)
    A('s_add_u32', s(7), s(7), G.WS_KEY)
    A('buffer_store_dword', v(18), v(19), s(44, 4), s(7), mods="offen")
    A('s_lshl_b32', s(7), s(5), 3)
    A('s_add_u32', s(7), s(7), WS_STAT2)
    A('buffer_store_dwordx2', v(16, 2), v(19), s(44, 4), s(7), mods="offen")
    G.stamp(A, 7)
    if G.PROF: A('s_waitcnt', 'vmcnt(0)')
    G.stamp_flush(A, 3, 8)
    A.label('K3_END')
    A('s_endpgm')
    G.finish(A, 'k3_kernel', 256, 512, L3_Y + 10240)

def gen_all():
    gen_k3()
    try:
        import gen_k4
        gen_k4.G = G
        gen_k4.gen_all()
    except ImportError:
        pass
```

```python
import math
from asmlib import Asm, VAlloc, v, s, fhex, f2u
import gen_k3 as K3
from gen_k3 import rnd, reduce63, h2_chain, load10, load5, unpack, WS_STAT2, WS_SEL, WS_A

G = None
LOG2E = 1.4426950408889634

def tile_decode(A, ngroups, end):
    A('s_and_b32', s(4), s(2), 7)
    A('s_lshr_b32', s(5), s(2), 5)
    A('s_lshl_b32', s(5), s(5), 3)
    A('s_add_u32', s(4), s(4), s(5))
    A('s_cmp_ge_u32', s(4), ngroups)
    A('s_cbranch_scc1', end)
    A('s_lshr_b32', s(5), s(2), 3)
    A('s_and_b32', s(5), s(5), 3)
    A('s_lshl_b32', s(4), s(4), 6)
    A('s_lshl_b32', s(5), s(5), 4)
    A('s_add_u32', s(4), s(4), s(5))

L4_H = 0
L4_C = 10368
L4_P = 10752

def gen_k4():
    K3.G = G
    A = Asm()
    G.load_ptrs(A)
    tile_decode(A, 27, 'K4_END')
    A('v_and_b32', v(1), 63, v(0))
    A('v_lshrrev_b32', v(2), 6, v(0))
    A('v_readfirstlane_b32', s(3), v(2))
    VN, VG = 3, 4
    A('v_and_b32', v(VN), 15, v(1))
    A('v_lshrrev_b32', v(VG), 4, v(1))
    A('v_lshlrev_b32', v(5), 4, v(0))
    A('v_mul_u32_u24', v(6), 20, v(1))
    A('v_lshlrev_b32', v(7), 1, v(6))
    A('v_lshrrev_b32', v(8), 3, v(VN))
    A('v_lshlrev_b32', v(9), 6, v(8))
    A('v_lshl_add_u32', v(9), v(VG), 3, v(9))
    A('s_movk_i32', s(5), 3456)
    A('v_mul_u32_u24', v(10), s(5), v(9))
    A('v_and_b32', v(11), 7, v(VN))
    A('v_lshl_add_u32', v(10), v(11), 2, v(10))
    A('s_cmp_ge_u32', s(3), 5)
    A('s_cselect_b32', s(6), 5, 0)
    A('s_sub_u32', s(6), s(3), s(6))
    A('s_lshl_b32', s(6), s(6), 7)
    A('s_waitcnt', 'lgkmcnt(0)')
    A('s_cmp_ge_u32', s(3), 5)
    A('s_cselect_b32', s(48), s(G.P_UP), s(G.P_GATE))
    A('s_cselect_b32', s(49), s(G.P_UP + 1), s(G.P_GATE + 1))
    A('s_mov_b32', s(50), hex(640 * 3456))
    A('s_mov_b32', s(51), '0x20000')
    G.srd(A, 44, G.P_WS, G.WS_BYTES)
    KEY = 12
    A('s_mov_b32', s(7), G.WS_KEY)
    A('buffer_load_dwordx4', v(KEY, 4), v(5), s(44, 4), s(7), mods="offen")
    W = 16
    A('s_mul_i32', s(7), s(6), 3456)
    A('s_lshl_b32', s(8), s(4), 1)
    A('s_add_u32', s(7), s(7), s(8))
    for dc in range(2):
        for kk in range(8):
            A('buffer_load_dword', v(W + 8 * dc + kk), v(10), s(48, 4), s(7), mods="offen" + (" offset:3456" if kk & 1 else ""))
            if kk & 1: A('s_add_u32', s(7), s(7), 2 * 3456 if kk < 7 else (32 - 6) * 3456)
    SB, C1 = 32, 42
    A('s_movk_i32', s(7), 2560 * 3)
    load10(A, SB, 7, 44, s(7), G.WS_MOD)
    load10(A, C1, 7, 44, s(7), G.WS_MOD + 2560)
    A('s_movk_i32', s(7), 1296)
    A('v_mul_u32_u24', v(52), s(7), v(11))
    A('v_add_u32', v(9), s(6), v(9))
    A('v_lshl_add_u32', v(52), v(9), 1, v(52))
    A('v_and_b32', v(9), 1, v(VG))
    A('v_lshlrev_b32', v(9), 8, v(9))
    A('v_lshl_add_u32', v(9), v(8), 9, v(9))
    A('v_lshl_add_u32', v(9), v(11), 3, v(9))
    A('s_lshl_b32', s(7), s(3), 10)
    A('s_add_u32', s(7), s(7), L4_P)
    A('v_add_u32', v(53), s(7), v(9))
    A('v_lshrrev_b32', v(9), 1, v(VG))
    A('v_cmp_eq_u32', s(14, 2), v(9), v(8))
    A('s_mov_b32', s(60), '0x05040100')
    A('s_mov_b32', s(61), '0x07060302')
    A('s_cmp_ge_u32', s(3), 8)
    A('s_cbranch_scc1', 'K4_S2')
    A('s_waitcnt', 'vmcnt(22)')
    A('s_mov_b32', s(9), 0)
    for r in range(8):
        A('v_max3_u32', v(9), v(KEY), v(KEY + 1), v(KEY + 2))
        A('v_max_u32', v(9), v(9), v(KEY + 3))
        reduce63(A, 'v_max_u32', [9])
        A('v_readlane_b32', s(10), v(9), 63)
        if r < 7:
            for i in range(4): A('v_subrev_u32', v(KEY + i), s(10), v(KEY + i))
        A('s_add_u32', s(9), s(9), s(10))
        A('v_writelane_b32', v(54), s(9), r)
    A('s_lshl_b32', s(7), s(3), 5)
    A('v_lshl_add_u32', v(9), v(1), 2, s(7))
    A('s_mov_b64', 'exec', '0xff')
    A('ds_write_b32', v(9), v(54), mods=f"offset:{L4_C}")
    A('s_mov_b64', 'exec', -1)
    A.label('K4_S2')
    A.reset_hist()
    A('v_lshlrev_b32', v(9), 2, v(1))
    A('s_waitcnt', 'lgkmcnt(0)')
    A('s_barrier')
    A('s_cmp_ge_u32', s(3), 8)
    A('s_cbranch_scc1', 'K4_MM')
    A('ds_read_b32', v(KEY), v(9), mods=f"offset:{L4_C}")
    A('s_mov_b32', s(9), 0)
    A('s_waitcnt', 'lgkmcnt(0)')
    for r in range(8):
        A('v_mov_b32', v(9), v(KEY))
        reduce63(A, 'v_max_u32', [9])
        A('v_readlane_b32', s(10), v(9), 63)
        A('s_add_u32', s(9), s(9), s(10))
        if r < 7:
            A('s_cmp_eq_u32', s(3), r)
            A('s_cbranch_scc1', 'K4_GOT')
            A('v_subrev_u32', v(KEY), s(10), v(KEY))
    A.label('K4_GOT')
    A.reset_hist()
    A('s_and_b32', s(10), s(9), 2047)
    A('s_sub_u32', s(10), 2047, s(10))
    A('s_lshl_b32', s(11), s(10), 3)
    A('s_add_u32', s(11), s(11), WS_STAT2)
    A('s_load_dwordx2', s(12, 2), s(G.P_WS, 2), s(11))
    A('s_mul_i32', s(11), s(10), 1280)
    A('s_add_u32', s(11), s(11), G.WS_X1)
    XP, XF, H = 12, 56, 66
    load5(A, 76, 6, 44, s(11))
    A('s_cmp_lg_u32', s(2), 0)
    A('s_cbranch_scc1', 'K4_NOSEL')
    A('s_lshr_b32', s(11), s(9), 31)
    A('s_sub_u32', s(11), s(11), 1)
    A('s_or_b32', s(11), s(11), '0x80000000')
    A('s_xor_b32', s(11), s(11), s(9))
    A('s_and_b32', s(11), s(11), '0xffff0000')
    A('v_mov_b32', v(12), s(10))
    A('v_mov_b32', v(13), s(11))
    A('v_mov_b32', v(9), 0)
    A('s_lshl_b32', s(11), s(3), 3)
    A('s_add_u32', s(11), s(11), WS_SEL)
    A('buffer_store_dwordx2', v(12, 2), v(9), s(44, 4), s(11), mods="offen")
    A('s_waitcnt', 'vmcnt(0)')
    A.label('K4_NOSEL')
    A.reset_hist()
    A('s_mul_i32', s(11), s(3), 1296)
    A('v_add_u32', v(9), s(11), v(6))
    A('s_waitcnt', 'vmcnt(0) lgkmcnt(0)')
    unpack(A, XF, 76, 5)
    h2_chain(A, XF, H, 12, C1, SB)
    for p in range(5): A('v_cvt_pk_bf16_f32', v(76 + p), v(H + 2 * p), v(H + 2 * p + 1))
    A('ds_write2_b32', v(9), v(76), v(77), mods="offset0:0 offset1:1")
    A('ds_write2_b32', v(9), v(78), v(79), mods="offset0:2 offset1:3")
    A('ds_write_b32', v(9), v(80), mods="offset:16")
    A.label('K4_MM')
    A.reset_hist()
    A('s_waitcnt', 'vmcnt(0)')
    B = 56
    for dc in range(2):
        for c in range(2):
            for u in range(4):
                A('v_perm_b32', v(82 + 8 * dc + 4 * c + u), v(W + 8 * dc + 2 * u + 1), v(W + 8 * dc + 2 * u), s(60 + c))
    B = 82
    A('s_waitcnt', 'lgkmcnt(0)')
    A('s_barrier')
    A('ds_read_b128', v(16, 4), v(52))
    A('ds_read_b128', v(20, 4), v(52), mods="offset:64")
    ACC = 24
    A('s_waitcnt', 'lgkmcnt(1)')
    A('v_mfma_f32_16x16x32_bf16', v(ACC, 4), v(16, 4), v(B, 4), 0)
    A('v_mfma_f32_16x16x32_bf16', v(ACC + 4, 4), v(16, 4), v(B + 4, 4), 0)
    A('s_waitcnt', 'lgkmcnt(0)')
    A('v_mfma_f32_16x16x32_bf16', v(ACC, 4), v(20, 4), v(B + 8, 4), v(ACC, 4))
    A('v_mfma_f32_16x16x32_bf16', v(ACC + 4, 4), v(20, 4), v(B + 12, 4), v(ACC + 4, 4))
    A('s_mov_b64', 'exec', s(14, 2))
    for i in range(4):
        A('ds_write2_b32', v(53), v(ACC + i), v(ACC + 4 + i), mods=f"offset0:{16*i} offset1:{16*i+1}")
    A('s_mov_b64', 'exec', -1)
    A('v_lshlrev_b32', v(9), 2, v(0))
    A('s_waitcnt', 'lgkmcnt(0)')
    A('s_barrier')
    A('s_cmp_ge_u32', s(3), 2)
    A('s_cbranch_scc1', 'K4_END')
    P = 32
    for u in range(10):
        A('ds_read2st64_b32', v(P + 2 * u, 2), v(9), mods=f"offset0:{L4_P//256 + 4*u} offset1:{L4_P//256 + 4*u + 2}")
    A('v_lshrrev_b32', v(10), 4, v(0))
    A('v_mul_u32_u24', v(10), s(5), v(10))
    A('v_lshl_add_u32', v(10), v(VN), 1, v(10))
    A('s_lshl_b32', s(7), s(4), 1)
    A('s_add_u32', s(7), s(7), WS_A)
    A('s_waitcnt', 'lgkmcnt(0)')
    for base in (P, P + 10):
        A('v_pk_add_f32', v(base, 2), v(base, 2), v(base + 2, 2))
        A('v_pk_add_f32', v(base + 4, 2), v(base + 4, 2), v(base + 6, 2))
        A('v_pk_add_f32', v(base, 2), v(base, 2), v(base + 8, 2))
        A('v_pk_add_f32', v(base, 2), v(base, 2), v(base + 4, 2))
        A('v_add_f32', v(base), v(base), v(base + 1))
        rnd(A, base, base)
    A('v_mul_f32', v(12), fhex(-LOG2E), v(P))
    A('v_exp_f32', v(12), v(12))
    A('v_add_f32', v(12), 1.0, v(12))
    A('v_rcp_f32', v(12), v(12))
    A('v_mul_f32', v(12), v(12), v(P))
    rnd(A, 12, 12)
    A('v_mul_f32', v(12), v(12), v(P + 10))
    rnd(A, 12, 12)
    A('buffer_store_short_d16_hi', v(12), v(10), s(44, 4), s(7), mods="offen")
    A.label('K4_END')
    A('s_endpgm')
    G.finish(A, 'k4_kernel', 128, 640, L4_P + 10240)

def gen_k5():
    A = Asm()
    G.load_ptrs(A)
    tile_decode(A, 10, 'K5_END')
    A('v_and_b32', v(1), 63, v(0))
    A('v_lshrrev_b32', v(2), 6, v(0))
    A('v_readfirstlane_b32', s(3), v(2))
    VN, VG = 3, 4
    A('v_and_b32', v(VN), 15, v(1))
    A('v_lshrrev_b32', v(VG), 4, v(1))
    A('v_lshrrev_b32', v(8), 3, v(VN))
    A('v_mul_u32_u24', v(9), 96, v(8))
    A('v_lshl_add_u32', v(9), v(VG), 3, v(9))
    A('s_movk_i32', s(5), 1280)
    A('v_mul_u32_u24', v(10), s(5), v(9))
    A('v_and_b32', v(11), 7, v(VN))
    A('v_lshl_add_u32', v(10), v(11), 2, v(10))
    A('s_movk_i32', s(5), 3456)
    A('v_mul_u32_u24', v(5), s(5), v(11))
    A('v_lshl_add_u32', v(5), v(9), 1, v(5))
    A('v_lshrrev_b32', v(6), 4, v(0))
    A('v_lshlrev_b32', v(6), 3, v(6))
    A('s_mul_i32', s(6), s(3), 192)
    A('s_waitcnt', 'lgkmcnt(0)')
    G.srd(A, 44, G.P_WS, G.WS_BYTES)
    G.srd(A, 48, G.P_DOWN, 1728 * 1280)
    G.srd(A, 56, G.P_OUT, 2048 * 1280)
    SEL = 12
    A('s_mov_b32', s(7), WS_SEL)
    A('buffer_load_dwordx2', v(SEL, 2), v(6), s(44, 4), s(7), mods="offen")
    AO = 16
    A('s_lshl_b32', s(7), s(6), 1)
    A('s_add_u32', s(7), s(7), WS_A)
    for dc in range(3):
        A('buffer_load_dwordx4', v(AO + 4 * dc, 4), v(5), s(44, 4), s(7), mods=f"offen offset:{64*dc}")
    W = 28
    A('s_mul_i32', s(7), s(6), 1280)
    A('s_lshl_b32', s(8), s(4), 1)
    A('s_add_u32', s(7), s(7), s(8))
    for dc in range(3):
        for kk in range(8):
            A('buffer_load_dword', v(W + 8 * dc + kk), v(10), s(48, 4), s(7), mods=f"offen offset:{1280*(kk&3)}")
            if (kk & 3) == 3: A('s_add_u32', s(7), s(7), 4 * 1280 if kk < 7 else 28 * 1280)
    A('v_and_b32', v(9), 1, v(VG))
    A('v_lshlrev_b32', v(9), 8, v(9))
    A('v_lshl_add_u32', v(9), v(8), 9, v(9))
    A('v_lshl_add_u32', v(9), v(11), 3, v(9))
    A('s_lshl_b32', s(7), s(3), 10)
    A('v_add_u32', v(7), s(7), v(9))
    A('v_lshrrev_b32', v(9), 1, v(VG))
    A('v_cmp_eq_u32', s(14, 2), v(9), v(8))
    A('s_mov_b32', s(60), '0x05040100')
    A('s_mov_b32', s(61), '0x07060302')
    A('s_cmp_ge_u32', s(3), 2)
    A('s_cbranch_scc1', 'K5_MM')
    E = 80
    A('v_add_u32', v(9), s(4), v(VN))
    A('v_lshlrev_b32', v(6), 2, v(9))
    A('s_movk_i32', s(7), 2560 * 3)
    A('buffer_load_dword', v(E + 4), v(6), s(44, 4), s(7), mods=f"offen offset:{G.WS_MOD}")
    A('buffer_load_dword', v(E + 5), v(6), s(44, 4), s(7), mods=f"offen offset:{G.WS_MOD + 2560}")
    A('s_movk_i32', s(7), 2560 * 5)
    A('buffer_load_dword', v(E + 6), v(6), s(44, 4), s(7), mods=f"offen offset:{G.WS_MOD}")
    A('s_waitcnt', 'vmcnt(30)')
    A('v_and_b32', v(SEL), 2047, v(SEL))
    A('s_movk_i32', s(5), 1280)
    A('v_mul_u32_u24', v(6), s(5), v(SEL))
    A('v_lshl_add_u32', v(6), v(9), 1, v(6))
    A('v_lshlrev_b32', v(9), 3, v(SEL))
    A('s_mov_b32', s(7), G.WS_X1)
    A('buffer_load_ushort', v(E), v(6), s(44, 4), s(7), mods="offen")
    A('s_mov_b32', s(7), WS_STAT2)
    A('buffer_load_dwordx2', v(E + 2, 2), v(9), s(44, 4), s(7), mods="offen")
    A('v_mul_f32', v(SEL + 1), fhex(-LOG2E), v(SEL + 1))
    A('v_exp_f32', v(SEL + 1), v(SEL + 1))
    A('v_add_f32', v(SEL + 1), 1.0, v(SEL + 1))
    A('v_rcp_f32', v(SEL + 1), v(SEL + 1))
    rnd(A, SEL + 1, SEL + 1)
    A('s_waitcnt', 'vmcnt(2)')
    A('s_branch', 'K5_MM2')
    A.label('K5_MM')
    A('s_waitcnt', 'vmcnt(0)')
    A.label('K5_MM2')
    A.reset_hist()
    B = 52
    ACC = 88
    for dc in range(3):
        for c in range(2):
            for u in range(4):
                A('v_perm_b32', v(B + 8 * dc + 4 * c + u), v(W + 8 * dc + 2 * u + 1), v(W + 8 * dc + 2 * u), s(60 + c))
    for dc in range(3):
        for c in range(2):
            A('v_mfma_f32_16x16x32_bf16', v(ACC + 4 * c, 4), v(AO + 4 * dc, 4), v(B + 8 * dc + 4 * c, 4), v(ACC + 4 * c, 4) if dc else 0)
    A('s_mov_b64', 'exec', s(14, 2))
    for i in range(4):
        A('ds_write2_b32', v(7), v(ACC + i), v(ACC + 4 + i), mods=f"offset0:{16*i} offset1:{16*i+1}")
    A('s_mov_b64', 'exec', -1)
    A('v_lshlrev_b32', v(9), 2, v(0))
    A('s_waitcnt', 'lgkmcnt(0)')
    A('s_barrier')
    A('s_cmp_ge_u32', s(3), 2)
    A('s_cbranch_scc1', 'K5_END')
    P = 16
    for u in range(9):
        A('ds_read2st64_b32', v(P + 2 * u, 2), v(9), mods=f"offset0:{4*u} offset1:{4*u + 2}")
    A('s_waitcnt', 'vmcnt(0)')
    A('v_lshlrev_b32', v(E), 16, v(E))
    Hh = 40
    A('v_sub_f32', v(Hh), v(E), v(E + 2)); rnd(A, Hh, Hh)
    A('v_mul_f32', v(Hh), v(Hh), v(E + 3)); rnd(A, Hh, Hh)
    A('v_mul_f32', v(Hh), v(Hh), v(E + 5)); rnd(A, Hh, Hh)
    A('v_add_f32', v(Hh), v(Hh), v(E + 4)); rnd(A, Hh, Hh)
    A('s_waitcnt', 'lgkmcnt(0)')
    for u in range(4): A('v_pk_add_f32', v(P + 4 * u, 2), v(P + 4 * u, 2), v(P + 4 * u + 2, 2))
    A('v_pk_add_f32', v(P, 2), v(P, 2), v(P + 4, 2))
    A('v_pk_add_f32', v(P + 8, 2), v(P + 8, 2), v(P + 12, 2))
    A('v_pk_add_f32', v(P, 2), v(P, 2), v(P + 16, 2))
    A('v_pk_add_f32', v(P, 2), v(P, 2), v(P + 8, 2))
    A('v_add_f32', v(P), v(P), v(P + 1)); rnd(A, P, P)
    A('v_mul_f32', v(P), v(P), v(SEL + 1)); rnd(A, P, P)
    A('v_add_f32', v(P), v(P), v(Hh)); rnd(A, P, P)
    A('v_mul_f32', v(P), v(P), v(E + 6)); rnd(A, P, P)
    A('v_add_f32', v(P), v(P), v(E)); rnd(A, P, P)
    A('buffer_store_short_d16_hi', v(P), v(6), s(56, 4), 0, mods="offen")
    A.label('K5_END')
    A('s_endpgm')
    G.finish(A, 'k5_kernel', 64, 576, 9216)

def gen_all():
    gen_k4()
    gen_k5()
```

```python
import math
from asmlib import Asm, VAlloc, v, s, fhex, f2u

G = None

def cadd(A, d, a, b): A('v_pk_add_f32', v(d, 2), v(a, 2), v(b, 2))
def csub(A, d, a, b): A('v_pk_add_f32', v(d, 2), v(a, 2), v(b, 2), mods="neg_lo:[0,1] neg_hi:[0,1]")
def cfma_s(A, d, a, sp, hi, c, neg=False):
    m = "op_sel:[0,1,0] op_sel_hi:[1,1,1]" if hi else "op_sel_hi:[1,0,1]"
    if neg: m += " neg_lo:[1,0,0] neg_hi:[1,0,0]"
    A('v_pk_fma_f32', v(d, 2), v(a, 2), s(sp, 2), v(c, 2), mods=m)
def cmul_s(A, d, a, sp, hi):
    m = "op_sel:[0,1] op_sel_hi:[1,1]" if hi else "op_sel_hi:[1,0]"
    A('v_pk_mul_f32', v(d, 2), v(a, 2), s(sp, 2), mods=m)
def add_mi(A, d, m, n):
    A('v_pk_add_f32', v(d, 2), v(m, 2), v(n, 2), mods="op_sel:[0,1] op_sel_hi:[1,0] neg_hi:[0,1]")
def add_pi(A, d, m, n):
    A('v_pk_add_f32', v(d, 2), v(m, 2), v(n, 2), mods="op_sel:[0,1] op_sel_hi:[1,0] neg_lo:[0,1]")
def cmul(A, d, z, w, t, conj=False):
    A('v_pk_mul_f32', v(t, 2), v(z, 2), v(w, 2), mods="op_sel_hi:[1,0]")
    A('v_pk_fma_f32', v(d, 2), v(z, 2), v(w, 2), v(t, 2),
      mods="op_sel:[1,1,0] op_sel_hi:[0,1,1] " + ("neg_hi:[1,0,0]" if conj else "neg_lo:[1,0,0]"))

def dft5(A, x, out, tmp, sc, ss, inv):
    t1, t2, t3, t4, m1, m2 = tmp[:6]
    cadd(A, t1, x[1], x[4]); cadd(A, t2, x[2], x[3]); csub(A, t3, x[1], x[4]); csub(A, t4, x[2], x[3])
    cfma_s(A, m1, t1, sc, 0, x[0]); cfma_s(A, m2, t1, sc, 1, x[0])
    cadd(A, out[0], x[0], t1)
    cfma_s(A, m1, t2, sc, 1, m1); cfma_s(A, m2, t2, sc, 0, m2)
    cadd(A, out[0], out[0], t2)
    n1, n2 = t1, t2
    cmul_s(A, n1, t3, ss, 0); cmul_s(A, n2, t3, ss, 1)
    cfma_s(A, n1, t4, ss, 1, n1); cfma_s(A, n2, t4, ss, 0, n2, neg=True)
    mi, pi = (add_pi, add_mi) if inv else (add_mi, add_pi)
    mi(A, out[1], m1, n1); pi(A, out[4], m1, n1); mi(A, out[2], m2, n2); pi(A, out[3], m2, n2)

def dft10(A, x, out, u, tmp, sc, ss, inv):
    for e2 in range(5):
        a, b = x[(2 * e2) % 10], x[(5 + 2 * e2) % 10]
        cadd(A, u[e2], a, b); csub(A, u[5 + e2], a, b)
    for k1 in range(2):
        dft5(A, u[5 * k1:5 * k1 + 5], [out[(5 * k1 + 6 * k2) % 10] for k2 in range(5)], tmp, sc, ss, inv)

def dft5_consts(A, sc, ss):
    A('s_mov_b32', s(sc), fhex(math.cos(2 * math.pi / 5)))
    A('s_mov_b32', s(sc + 1), fhex(math.cos(4 * math.pi / 5)))
    A('s_mov_b32', s(ss), fhex(math.sin(2 * math.pi / 5)))
    A('s_mov_b32', s(ss + 1), fhex(math.sin(4 * math.pi / 5)))

def sincos_int(A, dc, ds, vi, n, t):
    A('v_cvt_f32_u32', v(t), v(vi))
    A('v_mul_f32', v(t), fhex(1.0 / n), v(t))
    A('v_cos_f32', v(dc), v(t))
    A('v_sin_f32', v(ds), v(t))

def stageA_phase_regs(A, vbase, vdel, vzeta, vmag, vq, vka, va, sj, t0, mag1, mag0):
    A('v_mul_u32_u24', v(t0), v(va), v(vka))
    A('v_lshlrev_b32', v(t0), 9, v(t0))
    A('v_mul_u32_u24', v(vbase), s(sj), v(vq))
    A('v_sub_u32', v(vbase), 0, v(vbase))
    A('v_lshlrev_b32', v(vdel), 8, v(vq))
    A('v_sub_u32', v(vdel), 0, v(vdel))
    A('v_cmp_eq_u32', 'vcc', 0, v(vq))
    A('v_mov_b32', v(vzeta), 256)
    A('v_cndmask_b32', v(vbase), v(vbase), v(vzeta), 'vcc')
    A('v_sub_u32', v(vbase), v(vbase), v(t0))
    A('v_mov_b32', v(t0), -512)
    A('v_cndmask_b32', v(vzeta), 0, v(t0), 'vcc')
    A('v_mov_b32', v(vmag), fhex(mag1))
    A('v_mov_b32', v(t0), fhex(mag0))
    A('v_cndmask_b32', v(vmag), v(vmag), v(t0), 'vcc')

LDS1_K1 = 0
LDS2_K1 = 10304

def gen_k1():
    A = Asm()
    G.load_ptrs(A)
    A('s_cmp_ge_u32', s(2), 256)
    A('s_cbranch_scc1', 'K1_END')
    A('v_and_b32', v(1), 63, v(0))
    A('v_lshrrev_b32', v(2), 6, v(0))
    A('v_readfirstlane_b32', s(3), v(2))
    A('s_lshl_b32', s(4), s(2), 3)
    A('s_mul_i32', s(5), s(2), 1280)
    A('v_lshlrev_b32', v(3), 2, v(0))
    A('v_lshlrev_b32', v(4), 3, v(0))
    A('v_min_u32', v(5), 39, v(1))
    A('v_lshlrev_b32', v(5), 2, v(5))
    A('s_waitcnt', 'lgkmcnt(0)')
    G.stamp(A, 0)
    G.srd(A, 44, G.P_WS, G.WS_BYTES)
    G.srd(A, 48, G.P_X, 2048 * 1280)
    ST = 52
    for t in range(8):
        A('s_load_dwordx2', s(ST + 2 * t, 2), s(G.P_WS, 2), s(4), mods=f"offset:{G.WS_STAT + 2048*t}")
    VX = 8
    for t in range(8):
        A('buffer_load_dword', v(VX + t), v(3), s(48, 4), s(5), mods="offen")
        if t < 7: A('s_add_u32', s(5), s(5), 256 * 1280)
    VSA, VC1 = 16, 18
    A('buffer_load_dwordx2', v(VSA, 2), v(4), s(44, 4), 0, mods=f"offen offset:{G.WS_MOD}")
    A('buffer_load_dwordx2', v(VC1, 2), v(4), s(44, 4), 0, mods=f"offen offset:{G.WS_MOD + 2560}")
    A('s_movk_i32', s(6), G.WS_MAXM)
    A('buffer_load_dword', v(6), v(5), s(44, 4), s(6), mods="offen")
    VN, VG, VKA, VQ = 76, 77, 78, 79
    A('v_and_b32', v(VN), 15, v(1))
    A('v_lshrrev_b32', v(VG), 4, v(1))
    A('v_and_b32', v(VKA), 3, v(VN))
    A('v_lshrrev_b32', v(VQ), 2, v(VN))
    BRH, BRL, BIH, BIL = 20, 24, 28, 32
    vb, vd, vz, vm, t0 = 80, 81, 82, 83, 84
    sA = 1 / math.sqrt(32)
    stageA_phase_regs(A, vb, vd, vz, vm, VQ, VKA, VG, 2, t0, sA, sA * math.sqrt(2))
    for u in range(4):
        c0, s0, c1, s1, ta, tb = 86, 87, 88, 89, 90, 91
        A('v_and_b32', v(ta), 2047, v(vb))
        A('v_add3_u32', v(tb), v(vb), v(vd), v(vz))
        A('v_and_b32', v(tb), 2047, v(tb))
        if u < 3:
            A('v_lshl_add_u32', v(vb), v(vd), 1, v(vb))
        sincos_int(A, c0, s0, ta, 2048, ta)
        sincos_int(A, c1, s1, tb, 2048, tb)
        for r in (c0, s0, c1, s1):
            A('v_mul_f32', v(r), v(r), v(vm))
        for (H, L, a, b) in ((BRH, BRL, c0, c1), (BIH, BIL, s0, s1)):
            A('v_cvt_pk_bf16_f32', v(H + u), v(a), v(b))
            A('v_lshlrev_b32', v(ta), 16, v(H + u))
            A('v_and_b32', v(tb), '0xffff0000', v(H + u))
            A('v_sub_f32', v(a), v(a), v(ta))
            A('v_sub_f32', v(b), v(b), v(tb))
            A('v_cvt_pk_bf16_f32', v(L + u), v(a), v(b))
    BB = 52
    A('v_lshrrev_b32', v(80), 1, v(VN))
    A('v_and_b32', v(81), 1, v(VN))
    A('v_lshlrev_b32', v(81), 2, v(81))
    A('v_lshlrev_b32', v(82), 2, v(VG))
    for mu in range(2):
        for c in range(4):
            A('v_add_u32', v(84), c, v(82))
            if mu: A('v_add_u32', v(85), 8, v(80))
            A('v_mad_u32_u24', v(84), v(84), v(85 if mu else 80), v(81))
            A('v_and_b32', v(84), 15, v(84))
            sincos_int(A, 86, 87, 84, 16, 84)
            A('v_mul_f32', v(86), fhex(0.25), v(86))
            A('v_mul_f32', v(87), fhex(0.25), v(87))
            A('v_cvt_pk_f16_f32', v(BB + 4 * mu + c), v(86), v(87))
    TW2 = 60
    sC = 1 / math.sqrt(10)
    A('s_lshl_b32', s(7), s(3), 1)
    A('s_add_u32', s(8), s(7), 1)
    A('v_lshlrev_b32', v(80), 1, v(VG))
    for mu in range(2):
        for h in range(2):
            A('v_add_u32', v(81), 8 * mu + h, v(80))
            for tl in range(2):
                r = TW2 + ((mu * 2 + h) * 2 + tl) * 2
                A('v_mul_u32_u24', v(84), s(7 + tl), v(81))
                sincos_int(A, r, r + 1, 84, 160, 84)
                A('v_mul_f32', v(r), fhex(sC), v(r))
                A('v_mul_f32', v(r + 1), fhex(-sC), v(r + 1))
    G.stamp(A, 1)
    A('s_waitcnt', 'vmcnt(0)')
    G.stamp(A, 2)
    A('v_lshrrev_b32', v(6), 23, v(6))
    A('v_add_u32', v(80), 5, v(6))
    A('v_cmp_gt_u32', 'vcc', 20, v(1))
    A('v_cndmask_b32', v(6), v(80), v(6), 'vcc')
    G.wave_allreduce(A, 'v_max_u32', [6], [80])
    A('v_min_u32', v(6), 255, v(6))
    A('v_sub_u32', v(7), 256, v(6))
    A('v_lshlrev_b32', v(7), 23, v(7))
    TW1 = 36
    A('v_mul_u32_u24', v(80), 40, v(VG))
    A('v_add_u32', v(80), s(7), v(80))
    for tl in range(2):
        for i in range(4):
            A('v_add_u32', v(84), tl + 10 * i, v(80))
            A('v_mul_u32_u24', v(84), v(84), v(VKA))
            sincos_int(A, TW1 + 8 * tl + i, TW1 + 8 * tl + 4 + i, 84, 640, 84)
            A('v_mul_f32', v(TW1 + 8 * tl + i), v(TW1 + 8 * tl + i), v(7))
            A('v_mul_f32', v(TW1 + 8 * tl + 4 + i), '-' + v(TW1 + 8 * tl + 4 + i), v(7))
    A('s_waitcnt', 'lgkmcnt(0)')
    HH = 96
    for t in range(8):
        p = HH + 2 * t
        A('v_lshlrev_b32', v(p), 16, v(VX + t))
        A('v_and_b32', v(p + 1), '0xffff0000', v(VX + t))
    def stage(fn):
        for t in range(8): fn(t, HH + 2 * t)
    def rnd():
        for t in range(8): A('v_cvt_pk_bf16_f32', v(VX + t), v(HH + 2 * t), v(HH + 2 * t + 1))
        for t in range(8):
            A('v_lshlrev_b32', v(HH + 2 * t), 16, v(VX + t))
            A('v_and_b32', v(HH + 2 * t + 1), '0xffff0000', v(VX + t))
    stage(lambda t, p: A('v_pk_add_f32', v(p, 2), v(p, 2), s(ST + 2 * t, 2), mods="op_sel_hi:[1,0] neg_lo:[0,1] neg_hi:[0,1]"))
    rnd()
    stage(lambda t, p: A('v_pk_mul_f32', v(p, 2), v(p, 2), s(ST + 2 * t, 2), mods="op_sel:[0,1] op_sel_hi:[1,1]"))
    rnd()
    stage(lambda t, p: A('v_pk_mul_f32', v(p, 2), v(p, 2), v(VC1, 2)))
    rnd()
    stage(lambda t, p: A('v_pk_add_f32', v(p, 2), v(p, 2), v(VSA, 2)))
    C0, C1 = 112, 116
    for u in range(4):
        A('v_cvt_pk_bf16_f32', v(C0 + u), v(HH + 4 * u), v(HH + 4 * u + 2))
        A('v_cvt_pk_bf16_f32', v(C1 + u), v(HH + 4 * u + 1), v(HH + 4 * u + 3))
    A('v_mul_u32_u24', v(80), 205, v(0))
    A('v_lshrrev_b32', v(80), 14, v(80))
    A('v_lshl_add_u32', v(80), v(0), 1, v(80))
    A('v_lshlrev_b32', v(80), 4, v(80))
    A('ds_write_b128', v(80), v(C0, 4), mods=f"offset:{LDS1_K1}")
    A('ds_write_b128', v(80), v(C1, 4), mods=f"offset:{LDS1_K1+16}")
    A('v_mul_u32_u24', v(81), 10, v(VN))
    A('s_movk_i32', s(9), 161)
    A('v_mad_u32_u24', v(81), v(VG), s(9), v(81))
    A('v_add_u32', v(81), s(7), v(81))
    A('v_lshlrev_b32', v(81), 4, v(81))
    A('v_lshl_add_u32', v(82), v(VG), 5, v(VN))
    A('v_mul_u32_u24', v(82), 80, v(82))
    A('s_lshl_b32', s(9), s(3), 4)
    A('v_add_u32', v(82), s(9), v(82))
    A('s_waitcnt', 'lgkmcnt(0)')
    G.stamp(A, 3)
    A('s_barrier')
    G.stamp(A, 4)
    AO = 96
    A('ds_read_b128', v(AO, 4), v(81), mods=f"offset:{LDS1_K1}")
    A('ds_read_b128', v(AO + 4, 4), v(81), mods=f"offset:{LDS1_K1+16}")
    D1 = 104
    A('s_waitcnt', 'lgkmcnt(1)')
    A('v_mfma_f32_16x16x32_bf16', v(D1, 4), v(AO, 4), v(BRL, 4), 0)
    A('v_mfma_f32_16x16x32_bf16', v(D1 + 4, 4), v(AO, 4), v(BIL, 4), 0)
    A('s_waitcnt', 'lgkmcnt(0)')
    A('v_mfma_f32_16x16x32_bf16', v(D1 + 8, 4), v(AO + 4, 4), v(BRL, 4), 0)
    A('v_mfma_f32_16x16x32_bf16', v(D1 + 12, 4), v(AO + 4, 4), v(BIL, 4), 0)
    A('v_mfma_f32_16x16x32_bf16', v(D1, 4), v(AO, 4), v(BRH, 4), v(D1, 4))
    A('v_mfma_f32_16x16x32_bf16', v(D1 + 4, 4), v(AO, 4), v(BIH, 4), v(D1 + 4, 4))
    A('v_mfma_f32_16x16x32_bf16', v(D1 + 8, 4), v(AO + 4, 4), v(BRH, 4), v(D1 + 8, 4))
    A('v_mfma_f32_16x16x32_bf16', v(D1 + 12, 4), v(AO + 4, 4), v(BIH, 4), v(D1 + 12, 4))
    O = 120
    OP = 8
    D2 = 136
    for tl in range(2):
        re, im = D1 + 8 * tl, D1 + 8 * tl + 4
        tr, ti = TW1 + 8 * tl, TW1 + 8 * tl + 4
        orr, oi = O + 8 * tl, O + 8 * tl + 4
        for h in (0, 2):
            A('v_pk_mul_f32', v(orr + h, 2), v(re + h, 2), v(tr + h, 2))
            A('v_pk_mul_f32', v(oi + h, 2), v(re + h, 2), v(ti + h, 2))
        for h in (0, 2):
            A('v_pk_fma_f32', v(orr + h, 2), v(im + h, 2), v(ti + h, 2), v(orr + h, 2), mods="neg_lo:[1,0,0] neg_hi:[1,0,0]")
            A('v_pk_fma_f32', v(oi + h, 2), v(im + h, 2), v(tr + h, 2), v(oi + h, 2))
        for i in range(4):
            A('v_cvt_pk_f16_f32', v(OP + 4 * tl + i), v(orr + i), v(oi + i))
        for mu in range(2):
            A('v_mfma_f32_16x16x32_f16', v(D2 + 8 * tl + 4 * mu, 4), v(BB + 4 * mu, 4), v(OP + 4 * tl, 4), 0)
    W2 = 104
    for tl in range(2):
        for mu in range(2):
            for h in range(2):
                z = D2 + 8 * tl + 4 * mu + 2 * h
                w = TW2 + ((mu * 2 + h) * 2 + tl) * 2
                d = W2 + 4 * (mu * 2 + h) + 2 * tl
                cmul(A, d, z, w, d)
    for mu in range(2):
        for h in range(2):
            A('ds_write_b128', v(82), v(W2 + 4 * (mu * 2 + h), 4), mods=f"offset:{LDS2_K1 + (16*(8*mu+h))*80}")
    dft5_consts(A, 70, 72)
    A('v_mul_u32_u24', v(80), 80, v(0))
    A('v_mul_u32_u24', v(81), 40, v(0))
    A('s_mul_i32', s(5), s(2), 10240)
    A('s_add_u32', s(5), s(5), G.WS_Z1)
    A('s_waitcnt', 'lgkmcnt(0)')
    G.stamp(A, 5)
    A('s_barrier')
    G.stamp(A, 6)
    A('s_cmp_eq_u32', s(3), 4)
    A('s_cbranch_scc1', 'K1_W4')
    X = 8
    for u in range(5):
        A('ds_read_b128', v(X + 4 * u, 4), v(80), mods=f"offset:{LDS2_K1 + 16*u}")
    A('s_waitcnt', 'lgkmcnt(0)')
    x = [X + 2 * e for e in range(10)]
    u_ = [28 + 2 * e for e in range(10)]
    tmp = [48 + 2 * e for e in range(6)]
    out = [96 + 2 * e for e in range(10)]
    dft10(A, x, out, u_, tmp, 70, 72, False)
    P = 60
    for kc in range(10):
        A('v_cvt_pk_f16_f32', v(P + kc), v(out[kc]), v(out[kc] + 1))
    A('buffer_store_dwordx4', v(P, 4), v(81), s(44, 4), s(5), mods="offen")
    A('buffer_store_dwordx4', v(P + 4, 4), v(81), s(44, 4), s(5), mods="offen offset:16")
    A('buffer_store_dwordx2', v(P + 8, 2), v(81), s(44, 4), s(5), mods="offen offset:32")
    G.stamp(A, 7)
    if G.PROF: A('s_waitcnt', 'vmcnt(0)')
    G.stamp_flush(A, 1, 8)
    A('s_endpgm')
    A.label('K1_W4')
    A.reset_hist()
    A('s_cmp_lg_u32', s(2), 0)
    A('s_cbranch_scc1', 'K1_END')
    A('s_movk_i32', s(6), G.WS_MAXW)
    A('v_lshlrev_b32', v(8), 2, v(1))
    for m in range(10):
        A('buffer_load_dword', v(10 + m), v(8), s(44, 4), s(6), mods=f"offen offset:{256*m}")
    A('v_min_u32', v(9), 31, v(1))
    A('v_lshlrev_b32', v(9), 2, v(9))
    A('buffer_load_dword', v(20), v(9), s(44, 4), s(6), mods=f"offen offset:{2560}")
    A('s_waitcnt', 'vmcnt(0)')
    for m in range(1, 11):
        A('v_max_u32', v(10), v(10), v(10 + m))
    G.wave_allreduce(A, 'v_max_u32', [10], [11])
    A('v_lshrrev_b32', v(7), 7, v(10))
    A('v_min_u32', v(7), 251, v(7))
    A('v_mov_b32', v(8), 0)
    A('s_movk_i32', s(6), G.WS_SCAL)
    A('buffer_store_dwordx2', v(6, 2), v(8), s(44, 4), s(6), mods="offen")
    A.label('K1_END')
    A('s_endpgm')
    G.finish(A, 'k1_kernel', 256, 320, LDS2_K1 + 20480)

def gen_all(g):
    global G
    G = g
    gen_k1()
    try:
        import gen_k2
        gen_k2.G = g
        gen_k2.gen_all()
    except ImportError:
        pass
```

```python
import sys, math
from asmlib import Asm, VAlloc, v, s, fhex, f2u

KNAME = "adaLN_cond__spectral_gfnet__moe_arch_mod__prompt"

WS_MOD = 0
WS_MAXM = 16384
WS_SCAL = 16384 + 1024
WS_MAXW = 20480
WS_STAT = 32768
WS_KEY = 65536
WS_Z1 = 1 << 20
WS_Z2 = 4 << 20
WS_X1 = 8 << 20
WS_H2 = 12 << 20
WS_WE = 16 << 20
WS_PART = 24 << 20
WS_BYTES = 64 << 20

P_X, P_WR, P_WI, P_BX, P_BWR, P_GATE, P_UP, P_DOWN, P_C, P_WMOD, P_OUT, P_DBG, P_WS = [16 + 2 * i for i in range(13)]

def load_ptrs(A):
    A('s_load_dwordx16', s(16, 16), s(0, 2), 0)
    A('s_load_dwordx8', s(32, 8), s(0, 2), 64)
    A('s_load_dwordx2', s(40, 2), s(0, 2), 96)

def srd(A, d, p, nbytes):
    A('s_mov_b32', s(d), s(p))
    A('s_mov_b32', s(d + 1), s(p + 1))
    A('s_mov_b32', s(d + 2), hex(nbytes))
    A('s_mov_b32', s(d + 3), '0x20000')

def rbf_pair(A, d0, d1, a, b, t):
    A('v_cvt_pk_bf16_f32', v(t), v(a), v(b))
    A('v_lshlrev_b32', v(d0), 16, v(t))
    A('v_and_b32', v(d1), '0xffff0000', v(t))

def rbf1(A, d, a):
    A('v_cvt_pk_bf16_f32', v(d), v(a), v(a))
    A('v_lshlrev_b32', v(d), 16, v(d))

def row_reduce(A, op, regs):
    for sh in (8, 4, 2, 1):
        for r in regs:
            A(op + '_dpp', v(r), v(r), v(r), mods=f"row_ror:{sh} row_mask:0xf bank_mask:0xf")

def wave_allreduce(A, op, regs, tmps):
    row_reduce(A, op, regs)
    for sw in ('v_permlane16_swap_b32', 'v_permlane32_swap_b32'):
        for r, t in zip(regs, tmps):
            A('v_mov_b32', v(t), v(r))
        for r, t in zip(regs, tmps):
            A(sw, v(t), v(r))
        for r, t in zip(regs, tmps):
            A(op, v(r), v(r), v(t))

WS_PROF = 48 << 20
PROF = False
def stamp(A, k):
    if not PROF: return
    A('s_memrealtime', s(80 + 2 * k, 2))
    A('s_waitcnt', 'lgkmcnt(0)')
def stamp_flush(A, kid, nst, vtmp=250):
    if not PROF: return
    A('s_memrealtime', s(80 + 2 * nst, 2))
    A('s_waitcnt', 'lgkmcnt(0)')
    A('s_lshl_b32', s(78), s(2), 3)
    A('s_add_u32', s(78), s(78), s(3))
    A('s_add_u32', s(78), s(78), kid * 8192)
    A('s_lshl_b32', s(78), s(78), 6)
    A('s_add_u32', s(78), s(78), WS_PROF)
    A('s_mov_b64', 'exec', 1)
    A('v_mov_b32', v(vtmp), 0)
    for k in range(nst + 1):
        A('v_mov_b32', v(vtmp + 1), s(80 + 2 * k))
        A('buffer_store_dword', v(vtmp + 1), v(vtmp), s(44, 4), s(78), mods=f"offen offset:{4*k}")

kernels = []

def finish(A, name, grid, block, lds):
    kernels.append((name, grid, block, lds, A.lines, A.maxv, A.maxs))

NG0, NP0, NS0 = 120, 168, 256

def gen_k0():
    A = Asm()
    load_ptrs(A)
    A('s_cmp_ge_u32', s(2), NG0 + NP0 + NS0)
    A('s_cbranch_scc1', 'K0_END')
    A('v_and_b32', v(1), 63, v(0))
    A('v_lshrrev_b32', v(2), 6, v(0))
    A('v_readfirstlane_b32', s(3), v(2))
    A('s_waitcnt', 'lgkmcnt(0)')
    srd(A, 44, P_WS, WS_BYTES)
    A('s_cmp_ge_u32', s(2), NG0 + NP0)
    A('s_cbranch_scc1', 'K0_STATS')
    A('s_cmp_ge_u32', s(2), NG0)
    A('s_cbranch_scc1', 'K0_PREP')
    srd(A, 48, P_WMOD, 640 * 3840 * 2)
    srd(A, 52, P_C, 1280)
    A('v_lshrrev_b32', v(3), 2, v(0))
    A('v_and_b32', v(4), 3, v(0))
    A('v_lshlrev_b32', v(5), 1, v(3))
    for i in range(10):
        A('buffer_load_ushort', v(60 + i), v(5), s(52, 4), 0, mods=f"offen offset:{128*i}")
    A('s_movk_i32', s(4), 7680)
    A('v_mul_lo_u32', v(6), v(3), s(4))
    A('v_lshl_add_u32', v(6), v(4), 4, v(6))
    A('s_lshl_b32', s(5), s(2), 6)
    for i in range(10):
        A('buffer_load_dwordx4', v(8 + 4 * i, 4), v(6), s(48, 4), s(5), mods="offen")
        if i < 9:
            A('s_add_u32', s(5), s(5), 64 * 7680)
    for j in range(8):
        A('v_mov_b32', v(80 + j), 0)
    A('s_waitcnt', 'vmcnt(10)')
    for i in range(10):
        A('v_lshlrev_b32', v(60 + i), 16, v(60 + i))
    for i in range(10):
        A('v_mul_f32', v(70 + i), fhex(-1.4426950408889634), v(60 + i))
    for i in range(10):
        A('v_exp_f32', v(70 + i), v(70 + i))
    for i in range(10):
        A('v_add_f32', v(70 + i), 1.0, v(70 + i))
    for i in range(10):
        A('v_rcp_f32', v(70 + i), v(70 + i))
    for i in range(10):
        A('v_mul_f32', v(60 + i), v(60 + i), v(70 + i))
    for i in range(0, 10, 2):
        rbf_pair(A, 60 + i, 61 + i, 60 + i, 61 + i, 70)
    for i in range(10):
        A('s_waitcnt', f'vmcnt({9-i})')
        for j in range(4):
            A('v_lshlrev_b32', v(70), 16, v(8 + 4 * i + j))
            A('v_and_b32', v(71), '0xffff0000', v(8 + 4 * i + j))
            A('v_fmac_f32', v(80 + 2 * j), v(60 + i), v(70))
            A('v_fmac_f32', v(81 + 2 * j), v(60 + i), v(71))
    for j in range(4):
        A('v_permlane32_swap_b32', v(80 + j), v(84 + j))
    for j in range(4):
        A('v_add_f32', v(80 + j), v(80 + j), v(84 + j))
    for j in range(2):
        A('v_permlane16_swap_b32', v(80 + j), v(82 + j))
    for j in range(2):
        A('v_add_f32', v(80 + j), v(80 + j), v(82 + j))
    for sh in (8, 4):
        for j in range(2):
            A('v_add_f32_dpp', v(80 + j), v(80 + j), v(80 + j), mods=f"row_ror:{sh} row_mask:0xf bank_mask:0xf")
    A('v_lshrrev_b32', v(5), 4, v(1))
    A('v_lshlrev_b32', v(5), 3, v(5))
    A('v_lshl_add_u32', v(5), v(4), 5, v(5))
    A('v_lshl_add_u32', v(5), v(2), 7, v(5))
    A('ds_write_b64', v(5), v(80, 2))
    A('s_waitcnt', 'lgkmcnt(0)')
    A('s_barrier')
    A('s_cmp_lg_u32', s(3), 0)
    A('s_cbranch_scc1', 'K0_END')
    A('v_and_b32', v(5), 31, v(1))
    A('v_lshlrev_b32', v(6), 2, v(5))
    A('ds_read2st64_b32', v(8, 2), v(6), mods="offset0:0 offset1:1")
    A('ds_read_b32', v(10), v(6), mods="offset:128")
    A('ds_read_b32', v(11), v(6), mods="offset:384")
    A('s_waitcnt', 'lgkmcnt(0)')
    A('v_add_f32', v(8), v(8), v(10))
    A('v_add_f32', v(9), v(9), v(11))
    A('v_add_f32', v(8), v(8), v(9))
    rbf1(A, 8, 8)
    A('s_mul_i32', s(4), s(2), 3277)
    A('s_lshr_b32', s(4), s(4), 16)
    A('s_cmp_eq_u32', s(4), 1)
    A('s_cselect_b32', s(5), 1, 0)
    A('s_cmp_eq_u32', s(4), 4)
    A('s_cselect_b32', s(5), 1, s(5))
    A('s_cmp_eq_u32', s(5), 0)
    A('s_cbranch_scc1', 'K0_G1')
    A('v_add_f32', v(8), 1.0, v(8))
    rbf1(A, 8, 8)
    A.label('K0_G1')
    A('s_nop', 1)
    A('s_lshl_b32', s(5), s(2), 7)
    A('buffer_store_dword', v(8), v(6), s(44, 4), s(5), mods=f"offen offset:{WS_MOD}")
    A('v_and_b32', v(9), '0x7fffffff', v(8))
    wave_allreduce(A, 'v_max_u32', [9], [10])
    A('s_cmp_ge_u32', s(2), 40)
    A('s_cbranch_scc1', 'K0_END')
    A('s_lshl_b32', s(5), s(2), 2)
    A('s_add_u32', s(5), s(5), WS_MAXM)
    A('v_mov_b32', v(10), 0)
    A('buffer_store_dword', v(9), v(10), s(44, 4), s(5), mods="offen")
    A('s_branch', 'K0_END')

    A.label('K0_PREP')
    A.reset_hist()
    srd(A, 48, P_WR, 2048 * 321 * 2)
    srd(A, 52, P_WI, 2048 * 321 * 2)
    A('s_sub_u32', s(4), s(2), NG0)
    A('s_and_b32', s(5), s(4), 3)
    A('s_lshr_b32', s(6), s(4), 2)
    A('s_cmp_ge_u32', s(6), 30)
    A('s_cbranch_scc1', 'K0_P0')
    A('s_mul_i32', s(7), s(6), 6554)
    A('s_lshr_b32', s(7), s(7), 16)
    A('s_mul_i32', s(8), s(7), 10)
    A('s_sub_u32', s(8), s(6), s(8))
    A('s_mul_i32', s(9), s(7), 640)
    A('s_add_u32', s(9), s(9), s(8))
    A('v_mad_u32_u24', v(3), v(1), 10, s(9))
    A('s_add_u32', s(7), s(7), 1)
    A('s_mov_b64', s(10, 2), -1)
    A('s_branch', 'K0_P1')
    A.label('K0_P0')
    A('s_sub_u32', s(6), s(6), 30)
    A('s_cmp_ge_u32', s(6), 6)
    A('s_cselect_b32', s(7), 1, 0)
    A('s_mul_i32', s(8), s(7), 6)
    A('s_sub_u32', s(8), s(6), s(8))
    A('s_cmp_eq_u32', s(8), 5)
    A('s_cselect_b32', s(9), 320, s(8))
    A('s_cselect_b64', s(10, 2), 1, -1)
    A('s_lshl_b32', s(9), s(9), 1)
    A('s_add_u32', s(9), s(9), s(7))
    A('s_add_u32', s(9), s(9), 1920)
    A('v_mad_u32_u24', v(3), v(1), 10, s(9))
    A('s_lshl_b32', s(7), s(7), 2)
    A.label('K0_P1')
    A.reset_hist()
    A('s_nop', 1)
    A('v_lshlrev_b32', v(3), 11, v(3))
    A('s_lshl_b32', s(9), s(8), 6)
    A('v_add_u32', v(4), s(9), v(1))
    A('v_min_u32', v(5), 320, v(4))
    A('v_lshlrev_b32', v(5), 1, v(5))
    A('v_sub_u32', v(6), 640, v(4))
    A('v_cmp_eq_u32', 'vcc', 0, v(4))
    A('v_cndmask_b32', v(6), v(6), 0, 'vcc')
    A('v_min_u32', v(6), 320, v(6))
    A('v_lshlrev_b32', v(6), 1, v(6))
    A('v_mov_b32', v(7), 1.0)
    A('v_mov_b32', v(8), 0)
    A('v_cmp_lt_u32', 'vcc', 320, v(4))
    A('v_cndmask_b32', v(7), v(7), 0, 'vcc')
    A('v_cndmask_b32', v(8), v(8), 1.0, 'vcc')
    A('v_cmp_eq_u32', 'vcc', 0, v(4))
    A('s_movk_i32', s(14), 320)
    A('v_cmp_eq_u32', s(12, 2), s(14), v(4))
    A('s_or_b64', 'vcc', 'vcc', s(12, 2))
    A('v_cndmask_b32', v(7), v(7), 0.5, 'vcc')
    A('v_cndmask_b32', v(8), v(8), 0.5, 'vcc')
    A('s_lshl_b32', s(12), s(3), 5)
    A('s_add_u32', s(12), s(12), s(7))
    A('s_lshl_b32', s(13), s(5), 9)
    A('s_add_u32', s(12), s(12), s(13))
    B0 = 16
    for it in range(4):
        for i in range(4):
            A('s_add_u32', s(13), s(12), 8 * it + 128 * i)
            A('s_sub_u32', s(14), 2048, s(13))
            A('s_and_b32', s(14), s(14), 2047)
            A('s_mulk_i32', s(13), 642)
            A('s_mulk_i32', s(14), 642)
            r = B0 + (it * 4 + i) * 4
            A('buffer_load_ushort', v(r), v(5), s(48, 4), s(13), mods="offen")
            A('buffer_load_ushort', v(r + 1), v(5), s(52, 4), s(13), mods="offen")
            A('buffer_load_ushort', v(r + 2), v(6), s(48, 4), s(14), mods="offen")
            A('buffer_load_ushort', v(r + 3), v(6), s(52, 4), s(14), mods="offen")
            if it == 3 and i == 2:
                pass
    A('v_mov_b32', v(9), 0)
    A('s_mov_b64', 'exec', s(10, 2))
    A('s_lshl_b32', s(13), s(5), 9)
    A('s_lshl_b32', s(14), s(3), 7)
    A('s_add_u32', s(13), s(13), s(14))
    A('s_add_u32', s(13), s(13), WS_WE)
    for it in range(4):
        A('s_waitcnt', f'vmcnt({min(63, 48-16*it + 2*it)})')
        O = 84 + 8 * (it & 1)
        for i in range(4):
            r = B0 + (it * 4 + i) * 4
            for q in range(4):
                A('v_and_b32', v(10), '0x7fff', v(r + q))
                A('v_max_u32', v(9), v(9), v(10))
                A('v_lshlrev_b32', v(r + q), 16, v(r + q))
            A('v_mul_f32', v(O + i), v(7), v(r))
            A('v_fmac_f32', v(O + i), v(8), v(r + 2))
            A('v_mul_f32', v(O + 4 + i), v(7), v(r + 1))
            A('v_fma_f32', v(O + 4 + i), '-' + v(8), v(r + 3), v(O + 4 + i))
        A('buffer_store_dwordx4', v(O, 4), v(3), s(44, 4), s(13), mods=f"offen offset:{32*it}")
        A('buffer_store_dwordx4', v(O + 4, 4), v(3), s(44, 4), s(13), mods=f"offen offset:{32*it+16}")
    A('s_mov_b64', 'exec', -1)
    A('s_nop', 4)
    wave_allreduce(A, 'v_max_u32', [9], [10])
    A('s_lshl_b32', s(13), s(4), 2)
    A('s_add_u32', s(13), s(13), s(3))
    A('s_lshl_b32', s(13), s(13), 2)
    A('s_add_u32', s(13), s(13), WS_MAXW)
    A('v_mov_b32', v(10), 0)
    A('buffer_store_dword', v(9), v(10), s(44, 4), s(13), mods="offen")
    A('s_branch', 'K0_END')

    A.label('K0_STATS')
    A.reset_hist()
    srd(A, 48, P_X, 2048 * 1280)
    A('s_sub_u32', s(4), s(2), NG0 + NP0)
    A('s_lshl_b32', s(4), s(4), 2)
    A('s_add_u32', s(4), s(4), s(3))
    A('s_lshl_b32', s(4), s(4), 1)
    A('s_mul_i32', s(5), s(4), 1280)
    A('v_lshlrev_b32', v(3), 2, v(1))
    for r in range(2):
        for m in range(5):
            A('buffer_load_dword', v(8 + 5 * r + m), v(3), s(48, 4), s(5), mods=f"offen offset:{1280*r+256*m}")
    A('s_waitcnt', 'vmcnt(0)')
    X = 20
    for r in range(2):
        for m in range(5):
            A('v_lshlrev_b32', v(X + 10 * r + 2 * m), 16, v(8 + 5 * r + m))
            A('v_and_b32', v(X + 10 * r + 2 * m + 1), '0xffff0000', v(8 + 5 * r + m))
    for r in range(2):
        A('v_add_f32', v(40 + r), v(X + 10 * r), v(X + 10 * r + 1))
        for m in range(2, 10):
            A('v_add_f32', v(40 + r), v(40 + r), v(X + 10 * r + m))
    wave_allreduce(A, 'v_add_f32', [40, 41], [44, 45])
    for r in range(2):
        A('v_mul_f32', v(40 + r), fhex(1.0 / 640), v(40 + r))
    for r in range(2):
        for m in range(10):
            A('v_sub_f32', v(X + 10 * r + m), v(X + 10 * r + m), v(40 + r))
        A('v_mul_f32', v(42 + r), v(X + 10 * r), v(X + 10 * r))
        for m in range(1, 10):
            A('v_fmac_f32', v(42 + r), v(X + 10 * r + m), v(X + 10 * r + m))
    wave_allreduce(A, 'v_add_f32', [42, 43], [44, 45])
    for r in range(2):
        A('v_mul_f32', v(42 + r), fhex(1.0 / 640), v(42 + r))
    rbf_pair(A, 40, 41, 40, 41, 44)
    rbf_pair(A, 42, 43, 42, 43, 44)
    for r in range(2):
        A('v_add_f32', v(42 + r), fhex(1e-5), v(42 + r))
    rbf_pair(A, 42, 43, 42, 43, 44)
    for r in range(2):
        A('v_sqrt_f32', v(42 + r), v(42 + r))
    rbf_pair(A, 42, 43, 42, 43, 44)
    for r in range(2):
        A('v_rcp_f32', v(42 + r), v(42 + r))
    A('v_mov_b32', v(48), v(40))
    A('v_mov_b32', v(49), v(42))
    A('v_mov_b32', v(50), v(41))
    A('v_mov_b32', v(51), v(43))
    A('s_lshl_b32', s(5), s(4), 3)
    A('s_add_u32', s(5), s(5), WS_STAT)
    A('v_mov_b32', v(3), 0)
    A('buffer_store_dwordx4', v(48, 4), v(3), s(44, 4), s(5), mods="offen")
    A.label('K0_END')
    A('s_endpgm')
    finish(A, 'k0_kernel', NG0 + NP0 + NS0, 256, 512)

def emit(path, which=None):
    out = []
    hdr = open(f"cdna_kernels/{KNAME}.s.ref").read().split("\n")
    for l in hdr:
        if l.startswith(';') and '@launch' not in l and 'Override' not in l and 'grid=ceil' not in l:
            out.append(l)
    for (name, grid, block, lds, lines, nv, ns) in kernels:
        out.append(f"; @launch kernel={name} grid=({grid},1,1) block=({block},1,1) lds={lds}")
    out.append('.amdgcn_target "amdgcn-amd-amdhsa--gfx950"')
    out.append('.text')
    for (name, grid, block, lds, lines, nv, ns) in kernels:
        out.append(f".globl {name}\n.p2align 8\n.type {name},@function\n{name}:")
        out += lines
    out.append('.section .rodata,"a"')
    for (name, grid, block, lds, lines, nv, ns) in kernels:
        nv8 = (nv + 7) // 8 * 8
        out.append(f""".p2align 6
.amdhsa_kernel {name}
  .amdhsa_next_free_vgpr {nv8}
  .amdhsa_next_free_sgpr {max(ns, 16)}
  .amdhsa_accum_offset {nv8}
  .amdhsa_group_segment_fixed_size 0
  .amdhsa_kernarg_size 104
  .amdhsa_user_sgpr_count 2
  .amdhsa_user_sgpr_kernarg_segment_ptr 1
  .amdhsa_system_sgpr_workgroup_id_x 1
  .amdhsa_float_denorm_mode_32 3
  .amdhsa_float_denorm_mode_16_64 3
.end_amdhsa_kernel""")
    open(path, "w").write("\n".join(out) + "\n")

if __name__ == "__main__":
    import gen_rest
    if len(sys.argv) > 2 and sys.argv[2] == 'prof': PROF = True
    gen_k0()
    gen_rest.gen_all(sys.modules[__name__])
    emit(sys.argv[1] if len(sys.argv) > 1 else "out.s")
```

```python
import sys, math
import numpy as np
from asmlib import Asm, v, s, fhex, f2u

KNAME = "adaLN_cond__spectral_gfnet__moe_arch_mod__prompt"
WS_MOD = 0
WS_MAXM = 16384
WS_SCAL = 17408
WS_MAXW = 20480
WS_STAT = 32768
WS_STAT2 = 49152
WS_KEY = 65536
WS_SEL = 81920
WS_A = 98304
WS_WSP = 131072
WS_MP = 196608
WS_Z1 = 1 << 20
WS_Z2 = 4 << 20
WS_X1 = 8 << 20
WS_WE = 12 << 20
WS_GT = 16 << 20
WS_UT = 19 << 20
WS_DT = 22 << 20
WS_PROF = 48 << 20
WS_BYTES = 64 << 20
P_X, P_WR, P_WI, P_BX, P_BWR, P_GATE, P_UP, P_DOWN, P_C, P_WMOD, P_OUT, P_DBG, P_WS = [16 + 2 * i for i in range(13)]
LOG2E = 1.4426950408889634

class Cfg: PROF = False

def load_ptrs(A):
    A('s_load_dwordx16', s(16, 16), s(0, 2), 0)
    A('s_load_dwordx8', s(32, 8), s(0, 2), 64)
    A('s_load_dwordx2', s(40, 2), s(0, 2), 96)

def srd(A, d, p, nbytes):
    A('s_mov_b32', s(d), s(p))
    A('s_mov_b32', s(d + 1), s(p + 1))
    A('s_mov_b32', s(d + 2), hex(nbytes))
    A('s_mov_b32', s(d + 3), '0x20000')

_pcn = [0]
def srd_table(A, d):
    _pcn[0] += 1
    L = f"Lpc{_pcn[0]}"
    A('s_getpc_b64', s(d, 2))
    A.label(L)
    A('s_add_u32', s(d), s(d), f"tbl-{L}")
    A('s_addc_u32', s(d + 1), s(d + 1), 0)
    A('s_mov_b32', s(d + 2), hex(TBL_BYTES))
    A('s_mov_b32', s(d + 3), '0x20000')

def rnd(A, d, a): A('v_cvt_pk_bf16_f32', v(d), 0, v(a))
def row_reduce(A, op, regs):
    for sh in (8, 4, 2, 1):
        for r in regs: A(op + '_dpp', v(r), v(r), v(r), mods=f"row_ror:{sh} row_mask:0xf bank_mask:0xf")
def reduce63(A, op, regs):
    row_reduce(A, op, regs)
    for r in regs: A(op + '_dpp', v(r), v(r), v(r), mods="row_bcast:15 row_mask:0xa bank_mask:0xf")
    for r in regs: A(op + '_dpp', v(r), v(r), v(r), mods="row_bcast:31 row_mask:0xc bank_mask:0xf")
def load10(A, d, voff, sr, soff, off):
    A('buffer_load_dwordx4', v(d, 4), v(voff), s(sr, 4), soff, mods=f"offen offset:{off}")
    A('buffer_load_dwordx4', v(d + 4, 4), v(voff), s(sr, 4), soff, mods=f"offen offset:{off+16}")
    A('buffer_load_dwordx2', v(d + 8, 2), v(voff), s(sr, 4), soff, mods=f"offen offset:{off+32}")
def load5(A, d, voff, sr, soff, off=0):
    A('buffer_load_dwordx4', v(d, 4), v(voff), s(sr, 4), soff, mods=f"offen offset:{off}")
    A('buffer_load_dword', v(d + 4), v(voff), s(sr, 4), soff, mods=f"offen offset:{off+16}")
def store5(A, d, voff, sr, soff, off=0):
    A('buffer_store_dwordx4', v(d, 4), v(voff), s(sr, 4), soff, mods=f"offen offset:{off}")
    A('buffer_store_dword', v(d + 4), v(voff), s(sr, 4), soff, mods=f"offen offset:{off+16}")
def unpack(A, d, src, n):
    for p in range(n):
        A('v_lshlrev_b32', v(d + 2 * p), 16, v(src + p))
        A('v_and_b32', v(d + 2 * p + 1), '0xffff0000', v(src + p))
def h_chain(A, X, H, sst, C1, SB, n=5):
    for p in range(n): A('v_pk_add_f32', v(H + 2 * p, 2), v(X + 2 * p, 2), s(sst, 2), mods="op_sel_hi:[1,0] neg_lo:[0,1] neg_hi:[0,1]")
    for r in range(2 * n): rnd(A, H + r, H + r)
    for p in range(n): A('v_pk_mul_f32', v(H + 2 * p, 2), v(H + 2 * p, 2), s(sst, 2), mods="op_sel:[0,1] op_sel_hi:[1,1]")
    for r in range(2 * n): rnd(A, H + r, H + r)
    for p in range(n): A('v_pk_mul_f32', v(H + 2 * p, 2), v(H + 2 * p, 2), v(C1 + 2 * p, 2))
    for r in range(2 * n): rnd(A, H + r, H + r)
    for p in range(n): A('v_pk_add_f32', v(H + 2 * p, 2), v(H + 2 * p, 2), v(SB + 2 * p, 2))
def ln_stats(A, XF, T, vm, vr, stmp):
    A('v_pk_add_f32', v(T, 2), v(XF, 2), v(XF + 2, 2))
    A('v_pk_add_f32', v(T + 2, 2), v(XF + 4, 2), v(XF + 6, 2))
    A('v_pk_add_f32', v(T, 2), v(T, 2), v(XF + 8, 2))
    A('v_pk_add_f32', v(T, 2), v(T, 2), v(T + 2, 2))
    A('v_add_f32', v(vm), v(T), v(T + 1))
    reduce63(A, 'v_add_f32', [vm])
    A('v_mul_f32', v(vm), fhex(1.0 / 640), v(vm))
    A('v_readlane_b32', s(stmp), v(vm), 63)
    for p in range(5): A('v_pk_add_f32', v(T + 2 * p, 2), v(XF + 2 * p, 2), s(stmp, 2), mods="op_sel_hi:[1,0] neg_lo:[0,1] neg_hi:[0,1]")
    A('v_pk_mul_f32', v(T + 10, 2), v(T, 2), v(T, 2))
    A('v_pk_mul_f32', v(T + 12, 2), v(T + 2, 2), v(T + 2, 2))
    A('v_pk_fma_f32', v(T + 10, 2), v(T + 4, 2), v(T + 4, 2), v(T + 10, 2))
    A('v_pk_fma_f32', v(T + 12, 2), v(T + 6, 2), v(T + 6, 2), v(T + 12, 2))
    A('v_pk_fma_f32', v(T + 10, 2), v(T + 8, 2), v(T + 8, 2), v(T + 10, 2))
    A('v_pk_add_f32', v(T + 10, 2), v(T + 10, 2), v(T + 12, 2))
    A('v_add_f32', v(vr), v(T + 10), v(T + 11))
    rnd(A, vm, vm)
    reduce63(A, 'v_add_f32', [vr])
    A('v_mul_f32', v(vr), fhex(1.0 / 640), v(vr))
    rnd(A, vr, vr)
    A('v_add_f32', v(vr), fhex(1e-5), v(vr))
    rnd(A, vr, vr)
    A('v_sqrt_f32', v(vr), v(vr))
    rnd(A, vr, vr)
    A('v_rcp_f32', v(vr), v(vr))

def cadd(A, d, a, b): A('v_pk_add_f32', v(d, 2), v(a, 2), v(b, 2))
def csub(A, d, a, b): A('v_pk_add_f32', v(d, 2), v(a, 2), v(b, 2), mods="neg_lo:[0,1] neg_hi:[0,1]")
def cfma_s(A, d, a, sp, hi, c, neg=False):
    m = "op_sel:[0,1,0] op_sel_hi:[1,1,1]" if hi else "op_sel_hi:[1,0,1]"
    if neg: m += " neg_lo:[1,0,0] neg_hi:[1,0,0]"
    A('v_pk_fma_f32', v(d, 2), v(a, 2), s(sp, 2), v(c, 2), mods=m)
def cmul_s(A, d, a, sp, hi):
    m = "op_sel:[0,1] op_sel_hi:[1,1]" if hi else "op_sel_hi:[1,0]"
    A('v_pk_mul_f32', v(d, 2), v(a, 2), s(sp, 2), mods=m)
def add_mi(A, d, m, n): A('v_pk_add_f32', v(d, 2), v(m, 2), v(n, 2), mods="op_sel:[0,1] op_sel_hi:[1,0] neg_hi:[0,1]")
def add_pi(A, d, m, n): A('v_pk_add_f32', v(d, 2), v(m, 2), v(n, 2), mods="op_sel:[0,1] op_sel_hi:[1,0] neg_lo:[0,1]")
def cmul1(A, t, z, w): A('v_pk_mul_f32', v(t, 2), v(z, 2), v(w, 2), mods="op_sel_hi:[1,0]")
def cmul2(A, d, z, w, t, conj=False):
    A('v_pk_fma_f32', v(d, 2), v(z, 2), v(w, 2), v(t, 2),
      mods="op_sel:[1,1,0] op_sel_hi:[0,1,1] " + ("neg_hi:[1,0,0]" if conj else "neg_lo:[1,0,0]"))
def dft5(A, x, out, tmp, sc, ss, inv):
    t1, t2, t3, t4, m1, m2 = tmp[:6]
    cadd(A, t1, x[1], x[4]); cadd(A, t2, x[2], x[3]); csub(A, t3, x[1], x[4]); csub(A, t4, x[2], x[3])
    cfma_s(A, m1, t1, sc, 0, x[0]); cfma_s(A, m2, t1, sc, 1, x[0])
    cadd(A, out[0], x[0], t1)
    cfma_s(A, m1, t2, sc, 1, m1); cfma_s(A, m2, t2, sc, 0, m2)
    cadd(A, out[0], out[0], t2)
    n1, n2 = t1, t2
    cmul_s(A, n1, t3, ss, 0); cmul_s(A, n2, t3, ss, 1)
    cfma_s(A, n1, t4, ss, 1, n1); cfma_s(A, n2, t4, ss, 0, n2, neg=True)
    mi, pi = (add_pi, add_mi) if inv else (add_mi, add_pi)
    mi(A, out[1], m1, n1); pi(A, out[4], m1, n1); mi(A, out[2], m2, n2); pi(A, out[3], m2, n2)
def dft5_consts(A, sc, ss):
    A('s_mov_b32', s(sc), fhex(math.cos(2 * math.pi / 5)))
    A('s_mov_b32', s(sc + 1), fhex(math.cos(4 * math.pi / 5)))
    A('s_mov_b32', s(ss), fhex(math.sin(2 * math.pi / 5)))
    A('s_mov_b32', s(ss + 1), fhex(math.sin(4 * math.pi / 5)))
def cmul_quads(A, orr, oi, re, im, tr, ti, conj=False):
    for h in (0, 2):
        A('v_pk_mul_f32', v(orr + h, 2), v(re + h, 2), v(tr + h, 2))
        A('v_pk_mul_f32', v(oi + h, 2), v(im + h, 2), v(tr + h, 2))
    for h in (0, 2):
        neg = "neg_lo:[1,0,0] neg_hi:[1,0,0]"
        A('v_pk_fma_f32', v(orr + h, 2), v(im + h, 2), v(ti + h, 2), v(orr + h, 2), mods="" if conj else neg)
        A('v_pk_fma_f32', v(oi + h, 2), v(re + h, 2), v(ti + h, 2), v(oi + h, 2), mods=neg if conj else "")

def stamp(A, k):
    if not Cfg.PROF: return
    A('s_memrealtime', s(80 + 2 * k, 2))
    A('s_waitcnt', 'lgkmcnt(0)')
def stamp_flush(A, kid, nst, vtmp=2):
    if not Cfg.PROF: return
    A('s_waitcnt', 'vmcnt(0)')
    A('s_memrealtime', s(80 + 2 * nst, 2))
    A('s_waitcnt', 'lgkmcnt(0)')
    A('s_lshl_b32', s(78), s(2), 4)
    A('s_add_u32', s(78), s(78), s(3))
    A('s_add_u32', s(78), s(78), kid * 16384)
    A('s_lshl_b32', s(78), s(78), 6)
    A('s_add_u32', s(78), s(78), WS_PROF)
    A('s_mov_b64', 'exec', 1)
    A('v_mov_b32', v(vtmp), 0)
    for k in range(nst + 1):
        A('v_mov_b32', v(vtmp + 1), s(80 + 2 * k))
        A('buffer_store_dword', v(vtmp + 1), v(vtmp), s(44, 4), s(78), mods=f"offen offset:{4*k}")

def _bf16_bits(x):
    u = np.asarray(x, np.float32).view(np.uint32).astype(np.uint64)
    return (((u + 0x7fff + ((u >> 16) & 1)) >> 16) & 0xffff).astype(np.uint32)
def _bf16_val(b): return (b.astype(np.uint32) << 16).view(np.float32)
def _f16_bits(x): return np.asarray(x, np.float64).astype(np.float16).view(np.uint16).astype(np.uint32)
def _f32_bits(x): return np.asarray(x, np.float64).astype(np.float32).view(np.uint32)
def _clean(z):
    z = np.asarray(z); r = np.where(np.abs(z.real) < 1e-12, 0, z.real); i = np.where(np.abs(z.imag) < 1e-12, 0, z.imag)
    return r, i
def Wn(n, e): return np.exp(-2j * np.pi * (np.asarray(e) % n) / n)

TQ = {}
def build_tables():
    lane = np.arange(64); n = lane & 15; g = lane >> 4
    quads = []
    def add(name, arr):
        TQ[name] = len(quads); quads.append(np.asarray(arr, np.uint32))
    sA = 1 / math.sqrt(32)
    ka = n & 3; q = n >> 2; a = g
    t = np.arange(8)
    cq = np.where(q[:, None] == 0, 1 + 1j * (-1.0) ** t[None, :], Wn(8, t[None, :] * q[:, None]))
    C = cq * Wn(4, a * ka)[:, None] * sA
    for nm, part in zip(('BR', 'BI'), _clean(C)):
        hi = _bf16_bits(part); lo = _bf16_bits(part - _bf16_val(hi).astype(np.float64))
        add(nm + 'H', hi[:, 0::2] | (hi[:, 1::2] << 16))
        add(nm + 'L', lo[:, 0::2] | (lo[:, 1::2] << 16))
    c = np.arange(4)
    f = 4 * g[:, None] + c[None, :]
    for mu in range(2):
        kb = 8 * mu + (n >> 1); ri = n & 1
        z = np.conj(Wn(16, f * kb[:, None] + 4 * ri[:, None])) * 0.25
        r, i = _clean(z)
        add(f'BB{mu}', _f16_bits(r) | (_f16_bits(i) << 16))
    r, i = _clean(Wn(64, f * ka[:, None]))
    add('TW1R', _f32_bits(r)); add('TW1I', _f32_bits(i))
    cs, sn = _clean(np.conj(Wn(16, f * n[:, None])) * 0.25)
    pk = lambda x, y: _f16_bits(x) | (_f16_bits(y) << 16)
    add('FR', pk(cs, sn)); add('FI', pk(-sn, cs)); add('IR', pk(cs, -sn)); add('II', pk(sn, cs))
    r, i = _clean(Wn(256, f * n[:, None]))
    add('TR', _f32_bits(r)); add('TI', _f32_bits(i))
    r, i = _clean(Wn(512, n[:, None] + 64 * g[:, None] + 16 * c[None, :]))
    add('UR', _f32_bits(r)); add('UI', _f32_bits(i))
    r, i = _clean(np.conj(Wn(64, n[:, None] * c[None, :])))
    add('TW3R', _f32_bits(r)); add('TW3I', _f32_bits(i))
    tlo = n & 3; a = n >> 2; q = g
    for mu in range(2):
        tt = 4 * mu + tlo
        cq = np.where(q == 0, np.conj(1 + 1j * (-1.0) ** tt), 2 * np.conj(Wn(8, tt * q)))
        z = cq[:, None] * np.conj(Wn(4, a[:, None] * c[None, :])) * sA
        r, i = _clean(z)
        add(f'CA{mu}', pk(r, -i))
    return np.stack(quads)
TBL = build_tables()
TBL_BYTES = TBL.size * 4

def tload(A, d, name, voff, sr):
    off = TQ[name] * 1024
    return off

kernels = []
def finish(A, name, grid, block, lds):
    kernels.append((name, grid, block, lds, A.lines, A.maxv, A.maxs))

def emit(path):
    out = []
    hdr = open(f"cdna_kernels/{KNAME}.s.ref").read().split("\n")
    for l in hdr:
        if l.startswith(';') and '@launch' not in l and 'Override' not in l and 'grid=ceil' not in l:
            out.append(l)
    for (name, grid, block, lds, lines, nv, ns) in kernels:
        out.append(f"; @launch kernel={name} grid=({grid},1,1) block=({block},1,1) lds={lds}")
    out.append('.amdgcn_target "amdgcn-amd-amdhsa--gfx950"')
    out.append('.text')
    for (name, grid, block, lds, lines, nv, ns) in kernels:
        out.append(f".globl {name}\n.p2align 8\n.type {name},@function\n{name}:")
        out += lines
    out.append(".p2align 8\n.type tbl,@object\ntbl:")
    flat = TBL.reshape(-1)
    for i in range(0, len(flat), 8):
        out.append(".long " + ", ".join("0x%08x" % x for x in flat[i:i + 8]))
    out.append(f".size tbl, {TBL_BYTES}")
    out.append('.section .rodata,"a"')
    for (name, grid, block, lds, lines, nv, ns) in kernels:
        nv8 = max(8, (nv + 7) // 8 * 8)
        out.append(f""".p2align 6
.amdhsa_kernel {name}
  .amdhsa_next_free_vgpr {nv8}
  .amdhsa_next_free_sgpr {max(ns, 16)}
  .amdhsa_accum_offset {nv8}
  .amdhsa_group_segment_fixed_size 0
  .amdhsa_kernarg_size 104
  .amdhsa_user_sgpr_count 2
  .amdhsa_user_sgpr_kernarg_segment_ptr 1
  .amdhsa_system_sgpr_workgroup_id_x 1
  .amdhsa_float_denorm_mode_32 3
  .amdhsa_float_denorm_mode_16_64 3
.end_amdhsa_kernel""")
    open(path, "w").write("\n".join(out) + "\n")
```

```python
from common import *
import roles

SHADOW = {1: [], 2: [], 3: [], 4: [], 5: []}

def prologue(A, K, nmain):
    names = SHADOW[K]
    total = nmain + sum(roles.ROLES[n][0] for n in names)
    load_ptrs(A)
    A('s_cmp_ge_u32', s(2), total)
    A('s_cbranch_scc1', f'K{K}_EXIT')
    A('v_and_b32', v(1), 63, v(0))
    A('v_lshrrev_b32', v(2), 6, v(0))
    A('v_readfirstlane_b32', s(3), v(2))
    A('s_and_b32', s(4), s(2), 7)
    A('s_lshl_b32', s(4), s(4), 5)
    A('s_lshr_b32', s(5), s(2), 3)
    A('s_add_u32', s(4), s(4), s(5))
    return total

def after_ptrs(A, K, nmain):
    A('s_waitcnt', 'lgkmcnt(0)')
    stamp(A, 0)
    srd(A, 44, P_WS, WS_BYTES)
    if SHADOW[K]:
        A('s_cmp_ge_u32', s(2), nmain)
        A('s_cbranch_scc1', f'K{K}_SHADOW')

def epilogue(A, K, nmain, nst):
    A.label(f'K{K}_END')
    A.reset_hist()
    stamp(A, nst - 1)
    stamp_flush(A, K, nst)
    A.label(f'K{K}_EXIT')
    A('s_endpgm')
    if SHADOW[K]:
        A.label(f'K{K}_SHADOW')
        A.reset_hist()
        roles.dispatch_roles(A, SHADOW[K], nmain, f'K{K}_END', f'K{K}S')

def tloads(A, d, names, voff, sr, stmp):
    cur = None
    for i, nm in enumerate(names):
        off = TQ[nm] * 1024
        base = off & ~4095
        if base == 0: so = 0
        else:
            if cur != base:
                A('s_movk_i32', s(stmp), base); cur = base
            so = s(stmp)
        A('buffer_load_dwordx4', v(d + 4 * i, 4), v(voff), s(sr, 4), so, mods=f"offen offset:{off & 4095}")

E0, E1 = (0, 6, 2, 8, 4), (5, 1, 7, 3, 9)
L1_H, L1_M, L1_B = 0, 10240, 15360
QS = 5184

def gen_k1():
    A = Asm()
    total = prologue(A, 1, 256)
    A('s_lshl_b32', s(5), s(3), 8)
    A('s_add_u32', s(5), s(5), s(4))
    A('s_mul_i32', s(6), s(5), 1280)
    A('s_lshl_b32', s(7), s(4), 3)
    A('s_add_u32', s(7), s(7), s(3))
    A('s_lshl_b32', s(7), s(7), 3)
    A('v_mul_u32_u24', v(3), 20, v(1))
    A('v_lshlrev_b32', v(5), 4, v(1))
    A('v_lshlrev_b32', v(4), 4, v(0))
    A('v_add_u32', v(4), -192 * 16, v(4))
    after_ptrs(A, 1, 256)
    srd(A, 48, P_X, 2048 * 1280)
    A('s_load_dwordx2', s(12, 2), s(P_WS, 2), s(7), mods=f"offset:{WS_STAT}")
    X = 8
    load5(A, X, 3, 48, s(6))
    A('s_cmp_lt_u32', s(3), 3)
    A('s_cbranch_scc1', 'K1_L1')
    A('s_mov_b32', s(7), WS_MP)
    for p in range(5):
        A('buffer_load_dwordx4', v(16 + 4 * p, 4), v(4), s(44, 4), s(7), mods="offen")
        if p < 4: A('s_add_u32', s(7), s(7), 15360)
    A.label('K1_L1')
    VN, VG = 6, 7
    A('v_and_b32', v(VN), 15, v(1))
    A('v_lshrrev_b32', v(VG), 4, v(1))
    BRH, BRL, BIH, BIL, BB, TW1, TW2 = 40, 44, 48, 52, 56, 64, 72
    A('s_cmp_ge_u32', s(3), 5)
    A('s_cbranch_scc1', 'K1_L2')
    srd_table(A, 56)
    tloads(A, 40, ['BRH', 'BRL', 'BIH', 'BIL', 'BB0', 'BB1', 'TW1R', 'TW1I'], 5, 56, 7)
    A('v_and_b32', v(96), 3, v(VN))
    A('v_lshl_add_u32', v(96), v(VG), 3, v(96))
    A('v_cvt_f32_u32', v(96), v(96))
    A('v_lshrrev_b32', v(97), 2, v(VN))
    A('v_mul_u32_u24', v(97), s(4), v(97))
    A('v_cvt_f32_u32', v(97), v(97))
    A('v_mul_f32', v(97), fhex(1 / 2048.0), v(97))
    A('s_lshl_b32', s(7), s(3), 1)
    A('v_cvt_f32_u32', v(98), s(7))
    A('v_add_f32', v(99), 1.0, v(98))
    A('v_mul_f32', v(98), fhex(1 / 640.0), v(98))
    A('v_mul_f32', v(99), fhex(1 / 640.0), v(99))
    A('v_add_f32', v(100), 4.0, v(96))
    A('v_add_f32', v(101), fhex(32.0), v(96))
    A('v_add_f32', v(102), fhex(36.0), v(96))
    sC = 1 / math.sqrt(10)
    A('s_mov_b32', s(8), fhex(sC))
    A('s_mov_b32', s(9), fhex(-sC))
    LF = (96, 100, 101, 102)
    for mh in range(4):
        for tl in range(2): A('v_fma_f32', v(104 + 2 * mh + tl), v(LF[mh]), v(98 + tl), v(97))
    for i in range(8):
        A('v_cos_f32', v(TW2 + 2 * i), v(104 + i))
        A('v_sin_f32', v(TW2 + 2 * i + 1), v(104 + i))
    for i in range(8): A('v_pk_mul_f32', v(TW2 + 2 * i, 2), v(TW2 + 2 * i, 2), s(8, 2))
    A('v_mul_u32_u24', v(93), 20, v(VN))
    A('s_movk_i32', s(7), 320)
    A('v_mad_u32_u24', v(93), v(VG), s(7), v(93))
    A('s_lshl_b32', s(7), s(3), 2)
    A('v_add_u32', v(93), s(7), v(93))
    A('v_and_b32', v(94), 3, v(VN))
    A('v_lshl_add_u32', v(94), v(VG), 3, v(94))
    A('v_mul_u32_u24', v(94), 80, v(94))
    A('v_lshrrev_b32', v(95), 2, v(VN))
    A('s_movk_i32', s(7), QS)
    A('v_mad_u32_u24', v(94), v(95), s(7), v(94))
    A('s_lshl_b32', s(7), s(3), 4)
    A('s_add_u32', s(7), s(7), L1_B)
    A('v_add_u32', v(94), s(7), v(94))
    A.label('K1_L2')
    A.reset_hist()
    AD = 88
    A('s_and_b32', s(11), s(3), 3)
    A('s_cmp_ge_u32', s(3), 4)
    A('s_cselect_b32', s(10), -1.0, 1.0)
    A('s_cbranch_scc1', 'K1_AH1')
    def addrs(KC, tag):
        A('s_cmp_eq_u32', s(11), 0)
        A('s_cbranch_scc1', tag + 'Q0')
        for k2 in range(5): A('v_lshl_add_u32', v(AD + k2), v(1), 2, 256 * KC[k2]) if 256 * KC[k2] <= 64 else (A('v_lshlrev_b32', v(AD + k2), 2, v(1)), A('v_add_u32', v(AD + k2), 256 * KC[k2], v(AD + k2)))
        A('s_branch', 'K1_ADONE')
        A.label(tag + 'Q0')
        A('s_movk_i32', s(7), 13108)
        for k2 in range(5):
            kc = KC[k2]
            if kc < 5: A('v_add_u32', v(AD + k2), 64 * kc, v(1))
            else: A('v_sub_u32', v(AD + k2), 640 - 64 * kc, v(1))
            A('v_mul_u32_u24', v(2), s(7), v(AD + k2))
            A('v_lshrrev_b32', v(2), 16, v(2))
            A('v_mad_u32_u24', v(AD + k2), v(2), 5, v(AD + k2))
            if kc == 5:
                A('v_cmp_eq_u32', 'vcc', 0, v(1))
                A('v_cndmask_b32', v(AD + k2), v(AD + k2), 0, 'vcc')
            if kc >= 5: A('v_add_u32', v(AD + k2), 5, v(AD + k2))
            A('v_lshlrev_b32', v(AD + k2), 2, v(AD + k2))
    addrs(E0, 'K1_A0')
    A('s_branch', 'K1_ADONE')
    A.label('K1_AH1')
    addrs(E1, 'K1_A1')
    A.label('K1_ADONE')
    A.reset_hist()
    A('s_mul_i32', s(14), s(4), 10240)
    A('s_mul_i32', s(7), s(11), 2560)
    A('s_add_u32', s(14), s(14), s(7))
    A('s_add_u32', s(14), s(14), WS_Z1)
    A('s_mul_i32', s(7), s(11), QS)
    A('s_add_u32', s(7), s(7), L1_B)
    A('v_mul_u32_u24', v(95), 80, v(1))
    A('v_add_u32', v(95), s(7), v(95))
    A('v_lshlrev_b32', v(36), 1, v(3))
    A('v_add_u32', v(36), L1_M, v(36))
    A('v_add_u32', v(37), 2560, v(36))
    A('s_mul_i32', s(7), s(3), 1280)
    A('v_add_u32', v(3), s(7), v(3))
    A('v_cmp_le_i32', 'vcc', 160 * 16, v(4))
    A('v_cndmask_b32', v(38), 0, 1.0, 'vcc')
    dft5_consts(A, 70, 72)
    A('s_mov_b32', s(60), '0x05040100')
    A('s_mov_b32', s(61), '0x07060302')
    stamp(A, 1)
    A('s_waitcnt', 'vmcnt(0) lgkmcnt(0)')
    stamp(A, 2)
    A('s_cmp_lt_u32', s(3), 3)
    A('s_cbranch_scc1', 'K1_L3')
    for h in (0, 2):
        A('v_pk_add_f32', v(16 + h, 2), v(16 + h, 2), v(20 + h, 2))
        A('v_pk_add_f32', v(24 + h, 2), v(24 + h, 2), v(28 + h, 2))
    for h in (0, 2): A('v_pk_add_f32', v(16 + h, 2), v(16 + h, 2), v(32 + h, 2))
    for h in (0, 2): A('v_pk_add_f32', v(16 + h, 2), v(16 + h, 2), v(24 + h, 2))
    for r in range(4): rnd(A, 16 + r, 16 + r)
    for h in (0, 2): A('v_pk_add_f32', v(16 + h, 2), v(16 + h, 2), v(38, 2), mods="op_sel_hi:[1,0]")
    for r in range(4): rnd(A, 16 + r, 16 + r)
    A('ds_write_b128', v(4), v(16, 4), mods=f"offset:{L1_M}")
    A.label('K1_L3')
    A.reset_hist()
    H = 104
    unpack(A, H, X, 5)
    for p in range(5): A('v_pk_add_f32', v(H + 2 * p, 2), v(H + 2 * p, 2), s(12, 2), mods="op_sel_hi:[1,0] neg_lo:[0,1] neg_hi:[0,1]")
    for r in range(10): rnd(A, H + r, H + r)
    for p in range(5): A('v_pk_mul_f32', v(H + 2 * p, 2), v(H + 2 * p, 2), s(12, 2), mods="op_sel:[0,1] op_sel_hi:[1,1]")
    for r in range(10): rnd(A, H + r, H + r)
    A('s_waitcnt', 'lgkmcnt(0)')
    A('s_barrier')
    SA, C1 = 16, 26
    for (d, a) in ((C1, 37), (SA, 36)):
        A('ds_read2_b64', v(d, 4), v(a), mods="offset0:0 offset1:1")
        A('ds_read2_b64', v(d + 4, 4), v(a), mods="offset0:2 offset1:3")
        A('ds_read_b64', v(d + 8, 2), v(a), mods="offset:32")
    A('s_waitcnt', 'lgkmcnt(3)')
    for p in range(5): A('v_pk_mul_f32', v(H + 2 * p, 2), v(H + 2 * p, 2), v(C1 + 2 * p, 2))
    for r in range(10): rnd(A, H + r, H + r)
    A('s_waitcnt', 'lgkmcnt(0)')
    for p in range(5): A('v_pk_add_f32', v(H + 2 * p, 2), v(H + 2 * p, 2), v(SA + 2 * p, 2))
    for p in range(5): A('v_cvt_pk_bf16_f32', v(X + p), v(H + 2 * p), v(H + 2 * p + 1))
    A('ds_write2_b32', v(3), v(X), v(X + 1), mods="offset0:0 offset1:1")
    A('ds_write2_b32', v(3), v(X + 2), v(X + 3), mods="offset0:2 offset1:3")
    A('ds_write_b32', v(3), v(X + 4), mods="offset:16")
    A('s_cmp_ge_u32', s(3), 5)
    A('s_cbranch_scc1', 'K1_L4')
    for b in (SA, C1):
        A('v_max3_f32', v(b), f'|{v(b)}|', f'|{v(b+1)}|', f'|{v(b+2)}|')
        A('v_max3_f32', v(b + 3), f'|{v(b+3)}|', f'|{v(b+4)}|', f'|{v(b+5)}|')
        A('v_max3_f32', v(b + 6), f'|{v(b+6)}|', f'|{v(b+7)}|', f'|{v(b+8)}|')
        A('v_max3_f32', v(b), v(b), v(b + 3), f'|{v(b+9)}|')
        A('v_max_f32', v(b), v(b), v(b + 6))
        A('v_lshrrev_b32', v(b), 23, v(b))
    A('v_add_u32', v(C1), 5, v(C1))
    A('v_max_u32', v(SA), v(SA), v(C1))
    reduce63(A, 'v_max_u32', [SA])
    A('v_readlane_b32', s(8), v(SA), 63)
    A('s_min_u32', s(8), s(8), 255)
    A('s_sub_u32', s(9), 256, s(8))
    A('s_lshl_b32', s(62), s(9), 23)
    for r in range(0, 8, 2): A('v_pk_mul_f32', v(TW1 + r, 2), v(TW1 + r, 2), s(62, 2), mods="op_sel_hi:[1,0]")
    A.label('K1_L4')
    A.reset_hist()
    A('s_waitcnt', 'lgkmcnt(0)')
    stamp(A, 3)
    A('s_barrier')
    stamp(A, 4)
    A('s_cmp_ge_u32', s(3), 5)
    A('s_cbranch_scc1', 'K1_L5')
    for u in range(4): A('ds_read2st64_b32', v(8 + 2 * u, 2), v(93), mods=f"offset0:{10*u} offset1:{10*u+5}")
    AO, D1, O, OP, D2, W2 = 16, 24, 96, 8, 104, 24
    for u in range(4):
        A('s_waitcnt', f'lgkmcnt({3-u})')
        A('v_perm_b32', v(AO + u), v(9 + 2 * u), v(8 + 2 * u), s(60))
        A('v_perm_b32', v(AO + 4 + u), v(9 + 2 * u), v(8 + 2 * u), s(61))
    for tl in range(2):
        A('v_mfma_f32_16x16x32_bf16', v(D1 + 8 * tl, 4), v(AO + 4 * tl, 4), v(BRL, 4), 0)
        A('v_mfma_f32_16x16x32_bf16', v(D1 + 8 * tl + 4, 4), v(AO + 4 * tl, 4), v(BIL, 4), 0)
    for tl in range(2):
        A('v_mfma_f32_16x16x32_bf16', v(D1 + 8 * tl, 4), v(AO + 4 * tl, 4), v(BRH, 4), v(D1 + 8 * tl, 4))
        A('v_mfma_f32_16x16x32_bf16', v(D1 + 8 * tl + 4, 4), v(AO + 4 * tl, 4), v(BIH, 4), v(D1 + 8 * tl + 4, 4))
    for tl in range(2):
        cmul_quads(A, O, O + 4, D1 + 8 * tl, D1 + 8 * tl + 4, TW1, TW1 + 4)
        for i in range(4): A('v_cvt_pk_f16_f32', v(OP + 4 * tl + i), v(O + i), v(O + 4 + i))
        for mu in range(2):
            A('v_mfma_f32_16x16x32_f16', v(D2 + 8 * tl + 4 * mu, 4), v(BB + 4 * mu, 4), v(OP + 4 * tl, 4), 0)
    for tl in range(2):
        for mh in range(4): cmul1(A, W2 + 4 * mh + 2 * tl, D2 + 8 * tl + 2 * mh, TW2 + (2 * mh + tl) * 2)
        for mh in range(4): cmul2(A, W2 + 4 * mh + 2 * tl, D2 + 8 * tl + 2 * mh, TW2 + (2 * mh + tl) * 2, W2 + 4 * mh + 2 * tl)
    for mh in range(4):
        A('ds_write_b128', v(94), v(W2 + 4 * mh, 4), mods=f"offset:{(4*(mh&1) + 32*(mh>>1))*80}")
    A('s_add_u32', s(7), s(2), s(3))
    A('s_cmp_lg_u32', s(7), 0)
    A('s_cbranch_scc1', 'K1_L5')
    A('v_mov_b32', v(8), s(8))
    A('v_mov_b32', v(9), 0)
    A('s_movk_i32', s(7), WS_SCAL)
    A('buffer_store_dword', v(8), v(9), s(44, 4), s(7), mods="offen")
    A.label('K1_L5')
    A.reset_hist()
    A('s_waitcnt', 'lgkmcnt(0)')
    stamp(A, 5)
    A('s_barrier')
    stamp(A, 6)
    XX = 8
    for u in range(5): A('ds_read_b128', v(XX + 4 * u, 4), v(95), mods=f"offset:{16*u}")
    A('s_mov_b32', s(11), s(10))
    U, OUT, TMP = 28, 40, 52
    A('s_waitcnt', 'lgkmcnt(0)')
    for e2 in range(5):
        A('v_pk_fma_f32', v(U + 2 * e2, 2), v(XX + 2 * ((5 + 2 * e2) % 10), 2), s(10, 2), v(XX + 2 * ((2 * e2) % 10), 2))
    dft5(A, [U + 2 * i for i in range(5)], [OUT + 2 * i for i in range(5)], [TMP + 2 * i for i in range(6)], 70, 72, False)
    for k2 in range(5):
        A('v_cvt_pk_f16_f32', v(XX + k2), v(OUT + 2 * k2), v(OUT + 2 * k2 + 1))
        A('buffer_store_dword', v(XX + k2), v(AD + k2), s(44, 4), s(14), mods="offen")
    epilogue(A, 1, 256, 8)
    finish(A, 'k1_kernel', total, 512, max(L1_B + 4 * QS, roles.ROLE_LDS))

def gen_k2():
    A = Asm()
    total = prologue(A, 2, 256)
    VN, VG = 2, 3
    A('v_and_b32', v(VN), 15, v(1))
    A('v_lshrrev_b32', v(VG), 4, v(1))
    A('v_lshl_add_u32', v(4), v(VG), 6, v(VN))
    A('s_movk_i32', s(5), 10240)
    A('v_mul_u32_u24', v(5), s(5), v(4))
    A('v_lshlrev_b32', v(6), 4, v(1))
    A('v_mul_u32_u24', v(7), 40, v(4))
    A('v_min_u32', v(4), 49, v(1))
    A('v_lshlrev_b32', v(4), 4, v(4))
    A('s_lshr_b32', s(6), s(4), 6)
    A('s_and_b32', s(7), s(4), 63)
    after_ptrs(A, 2, 256)
    A('s_cmp_eq_u32', s(4), 0)
    A('s_cselect_b32', s(5), 6, 5)
    A('s_cmp_ge_u32', s(3), s(5))
    A('s_cbranch_scc1', 'K2_EXIT')
    srd_table(A, 56)
    OP, PK, WE = 8, 16, 24
    FR, FI, IR, II, TR, TI, UR, UI = 40, 44, 48, 52, 56, 60, 64, 68
    A('s_mul_i32', s(8), s(4), 40)
    A('s_add_u32', s(8), s(8), WS_Z1)
    A('s_cmp_eq_u32', s(6), 0)
    A('s_cbranch_scc1', 'K2_T0')
    A('s_lshl_b32', s(9), s(3), 3)
    A('s_add_u32', s(8), s(8), s(9))
    for c, r in ((0, 0), (1, 4), (2, 2), (3, 6)):
        A('buffer_load_dwordx2', v(OP + r, 2), v(5), s(44, 4), s(8), mods="offen")
        if c < 3: A('s_add_u32', s(8), s(8), 163840)
    A('s_mul_i32', s(10), s(7), 10)
    A('s_lshl_b32', s(11), s(3), 1)
    A('s_add_u32', s(10), s(10), s(11))
    A('s_mul_i32', s(11), s(6), 321)
    A('s_add_u32', s(12), s(11), s(10))
    A('s_sub_u32', s(13), 8 * 321 + 640, s(12))
    A('s_cmp_lt_u32', s(7), 32)
    A('s_cselect_b32', s(10), s(12), s(13))
    A('s_cselect_b32', s(11), 1, -1)
    A('s_add_u32', s(11), s(11), s(10))
    A('s_and_b32', s(12), s(7), 31)
    A('s_or_b32', s(12), s(12), s(3))
    A('s_cmp_eq_u32', s(12), 0)
    A('s_cselect_b32', s(15), 1, 0)
    A('s_lshr_b32', s(12), s(7), 5)
    A('s_mul_i32', s(12), s(12), 5)
    A('s_add_u32', s(12), s(12), s(6))
    A('s_branch', 'K2_C')
    A.label('K2_T0')
    A('s_lshl_b32', s(9), s(3), 2)
    A('s_add_u32', s(62), s(9), 20)
    A('s_or_b32', s(12), s(4), s(3))
    A('s_cmp_eq_u32', s(12), 0)
    A('s_cselect_b32', s(15), 2, 0)
    A('s_cselect_b32', s(62), 0, s(62))
    A('s_mov_b32', s(12), 0)
    A('s_cmp_eq_u32', s(3), 5)
    A('s_cselect_b32', s(15), 2, s(15))
    A('s_cselect_b32', s(62), 20, s(62))
    A('s_cselect_b32', s(12), 5, 0)
    A('s_add_u32', s(13), s(8), s(62))
    A('s_add_u32', s(8), s(8), s(9))
    for c in range(4):
        A('buffer_load_dword', v(OP + c), v(5), s(44, 4), s(8), mods="offen")
        A('buffer_load_dword', v(OP + 4 + c), v(5), s(44, 4), s(13), mods="offen")
        if c < 3:
            A('s_add_u32', s(8), s(8), 163840)
            A('s_add_u32', s(13), s(13), 163840)
    tloads(A, UR, ['UR', 'UI'], 6, 56, 13)
    A('s_mul_i32', s(10), s(7), 5)
    A('s_add_u32', s(10), s(10), s(3))
    A('s_add_u32', s(11), s(10), 4 * 321)
    A.label('K2_C')
    A.reset_hist()
    tloads(A, FR, ['FR', 'FI', 'TR', 'TI'][:2], 6, 56, 13)
    tloads(A, TR, ['TR', 'TI'], 6, 56, 13)
    A('s_movk_i32', s(13), WS_MAXW)
    A('buffer_load_dwordx4', v(72, 4), v(4), s(44, 4), s(13), mods="offen")
    A('s_lshl_b32', s(10), s(10), 10)
    A('s_lshl_b32', s(11), s(11), 10)
    A('s_add_u32', s(10), s(10), WS_WE)
    A('s_add_u32', s(11), s(11), WS_WE)
    A('buffer_load_dwordx4', v(PK, 4), v(6), s(44, 4), s(10), mods="offen")
    A('buffer_load_dwordx4', v(PK + 4, 4), v(6), s(44, 4), s(11), mods="offen")
    tloads(A, IR, ['IR', 'II'], 6, 56, 13)
    A('s_cmp_eq_u32', s(15), 0)
    A('s_cbranch_scc1', 'K2_NOSP')
    A('s_lshl_b32', s(12), s(12), 11)
    A('s_add_u32', s(12), s(12), WS_WSP)
    A('v_lshlrev_b32', v(4), 5, v(1))
    A('buffer_load_dwordx4', v(WE, 4), v(4), s(44, 4), s(12), mods="offen")
    A('buffer_load_dwordx4', v(WE + 4, 4), v(4), s(44, 4), s(12), mods="offen offset:16")
    A('s_add_u32', s(12), s(12), 4 * 2048)
    A('buffer_load_dwordx4', v(WE + 8, 4), v(4), s(44, 4), s(12), mods="offen")
    A('buffer_load_dwordx4', v(WE + 12, 4), v(4), s(44, 4), s(12), mods="offen offset:16")
    A('s_waitcnt', 'vmcnt(0)')
    A.label('K2_NOSP')
    A.reset_hist()
    D, O = 80, 96
    A('s_mul_i32', s(8), s(4), 10240)
    A('s_add_u32', s(8), s(8), WS_Z2)
    stamp(A, 1)
    A('s_cmp_eq_u32', s(6), 0)
    A('s_cbranch_scc1', 'K2_T0PRE')
    A('s_waitcnt', 'vmcnt(7)')
    A('v_swap_b32', v(OP + 1), v(OP + 4))
    A('v_swap_b32', v(OP + 3), v(OP + 6))
    A('s_branch', 'K2_MAIN')
    A.label('K2_T0PRE')
    A.reset_hist()
    A('s_waitcnt', 'vmcnt(7)')
    for c in range(4):
        a, b = v(OP + c), v(OP + 4 + c)
        A('v_fma_mix_f32', v(D + c), a, 1.0, b, mods="op_sel_hi:[1,0,1]")
        A('v_fma_mix_f32', v(D + 4 + c), a, 1.0, '-' + b, mods="op_sel:[1,0,1] op_sel_hi:[1,0,1]")
        A('v_fma_mix_f32', v(D + 8 + c), a, 1.0, b, mods="op_sel:[1,0,1] op_sel_hi:[1,0,1]")
        A('v_fma_mix_f32', v(D + 12 + c), a, -1.0, b, mods="op_sel_hi:[1,0,1]")
    cmul_quads(A, O, O + 4, D + 8, D + 12, UR, UI)
    for c in range(4):
        A('v_cvt_pk_f16_f32', v(OP + c), v(D + c), v(D + 4 + c))
        A('v_cvt_pk_f16_f32', v(OP + 4 + c), v(O + c), v(O + 4 + c))
    A.label('K2_MAIN')
    A.reset_hist()
    stamp(A, 2)
    A('s_nop', 1)
    def mf(P, dataA, CR, CI):
        op = v(OP + 4 * P, 4)
        for (dst, C) in ((D + 8 * P, CR), (D + 8 * P + 4, CI)):
            if dataA: A('v_mfma_f32_16x16x32_f16', v(dst, 4), op, v(C, 4), 0)
            else: A('v_mfma_f32_16x16x32_f16', v(dst, 4), v(C, 4), op, 0)
    def cvt(P):
        for c in range(4): A('v_cvt_pk_f16_f32', v(OP + 4 * P + c), v(O + 8 * P + c), v(O + 8 * P + 4 + c))
    mf(0, True, FR, FI); mf(1, True, FR, FI)
    A('s_waitcnt', 'vmcnt(4)')
    A('v_max3_u32', v(72), v(72), v(73), v(74))
    A('v_max_u32', v(72), v(72), v(75))
    reduce63(A, 'v_max_u32', [72])
    for P in range(2):
        cmul_quads(A, O + 8 * P, O + 8 * P + 4, D + 8 * P, D + 8 * P + 4, TR, TI)
        cvt(P)
        mf(P, False, FR, FI)
    A('v_readlane_b32', s(14), v(72), 63)
    A('s_lshr_b32', s(14), s(14), 7)
    A('s_min_u32', s(14), s(14), 251)
    A('s_cmp_eq_u32', s(6), 0)
    A('s_cselect_b32', s(12), 1, 0)
    A('s_add_u32', s(12), s(12), s(14))
    A('s_sub_u32', s(12), 252, s(12))
    A('s_max_i32', s(12), s(12), 1)
    A('s_lshl_b32', s(12), s(12), 23)
    stamp(A, 3)
    A('s_waitcnt', 'vmcnt(0)')
    stamp(A, 4)
    A('s_cmp_ge_u32', s(15), 2)
    A('s_cbranch_scc1', 'K2_U2')
    for c in range(4):
        A('v_lshlrev_b32', v(WE + 8 + c), 16, v(PK + 4 + c))
        A('v_and_b32', v(WE + 12 + c), '0xffff0000', v(PK + 4 + c))
    A('s_cmp_ge_u32', s(15), 1)
    A('s_cbranch_scc1', 'K2_U2')
    for c in range(4):
        A('v_lshlrev_b32', v(WE + c), 16, v(PK + c))
        A('v_and_b32', v(WE + 4 + c), '0xffff0000', v(PK + c))
    A.label('K2_U2')
    for r in range(0, 16, 2): A('v_pk_mul_f32', v(WE + r, 2), v(WE + r, 2), s(12, 2), mods="op_sel_hi:[1,0]")
    for P in range(2):
        cmul_quads(A, O + 8 * P, O + 8 * P + 4, D + 8 * P, D + 8 * P + 4, WE + 8 * P, WE + 8 * P + 4)
        cvt(P)
        mf(P, True, IR, II)
    for P in range(2):
        cmul_quads(A, O + 8 * P, O + 8 * P + 4, D + 8 * P, D + 8 * P + 4, TR, TI, conj=True)
        cvt(P)
        mf(P, False, IR, II)
    A('s_add_u32', s(10), s(8), s(9))
    A('s_cmp_eq_u32', s(6), 0)
    A('s_cbranch_scc1', 'K2_T0POST')
    A('s_nop', 7)
    for c in range(4):
        A('v_cvt_pk_f16_f32', v(O + 2 * c), v(D + c), v(D + 4 + c))
        A('v_cvt_pk_f16_f32', v(O + 2 * c + 1), v(D + 8 + c), v(D + 12 + c))
        A('buffer_store_dwordx2', v(O + 2 * c, 2), v(7), s(44, 4), s(10), mods=f"offen offset:{640*c}")
    A('s_branch', 'K2_END')
    A.label('K2_T0POST')
    A.reset_hist()
    A('s_nop', 7)
    A('s_add_u32', s(11), s(8), s(62))
    cmul_quads(A, O, O + 4, D + 8, D + 12, UR, UI, conj=True)
    T = 16
    for h in (0, 2):
        A('v_pk_add_f32', v(T + h, 2), v(D + h, 2), v(O + 4 + h, 2), mods="neg_lo:[0,1] neg_hi:[0,1]")
        A('v_pk_add_f32', v(T + 4 + h, 2), v(D + 4 + h, 2), v(O + h, 2))
        A('v_pk_add_f32', v(T + 8 + h, 2), v(D + h, 2), v(O + 4 + h, 2))
        A('v_pk_add_f32', v(T + 12 + h, 2), v(O + h, 2), v(D + 4 + h, 2), mods="neg_lo:[0,1] neg_hi:[0,1]")
    for c in range(4):
        A('v_cvt_pk_f16_f32', v(OP + c), v(T + c), v(T + 4 + c))
        A('v_cvt_pk_f16_f32', v(OP + 4 + c), v(T + 8 + c), v(T + 12 + c))
    for c in range(4):
        A('buffer_store_dword', v(OP + 4 + c), v(7), s(44, 4), s(11), mods=f"offen offset:{640*c}")
        A('buffer_store_dword', v(OP + c), v(7), s(44, 4), s(10), mods=f"offen offset:{640*c}")
    A('s_cmp_lg_u32', s(3), 5)
    A('s_cbranch_scc1', 'K2_END')
    A('v_mov_b32', v(16), s(14))
    A('v_mov_b32', v(17), 0)
    A('s_movk_i32', s(7), WS_SCAL + 4)
    A('buffer_store_dword', v(16), v(17), s(44, 4), s(7), mods="offen")
    epilogue(A, 2, 256, 6)
    finish(A, 'k2_kernel', total, 512, roles.ROLE_LDS if SHADOW[2] else 0)

L3_Y = 12800
def gen_k3():
    A = Asm()
    total = prologue(A, 3, 256)
    A('v_mul_u32_u24', v(5), 20, v(1))
    A('v_lshlrev_b32', v(6), 1, v(5))
    A('s_lshl_b32', s(5), s(3), 8)
    A('s_add_u32', s(5), s(5), s(4))
    A('s_mul_i32', s(6), s(5), 1280)
    A('s_and_b32', s(11), s(3), 3)
    AD = 20
    A('s_mul_i32', s(7), s(11), 64 * 10240)
    A('s_mul_i32', s(8), s(4), 40)
    A('s_add_u32', s(7), s(7), s(8))
    A('s_add_u32', s(7), s(7), WS_Z2)
    A('s_cmp_eq_u32', s(11), 0)
    A('s_cbranch_scc1', 'K3_AQ0')
    A('s_movk_i32', s(8), 6554)
    A('s_movk_i32', s(9), 10200)
    for kc in range(5):
        A('v_add_u32', v(AD + kc), 64 * kc, v(1))
        A('v_mul_u32_u24', v(2), s(8), v(AD + kc))
        A('v_lshrrev_b32', v(2), 16, v(2))
        A('v_mul_u32_u24', v(2), s(9), v(2))
        A('v_lshl_add_u32', v(AD + kc), v(AD + kc), 2, v(2))
        A('v_add_u32', v(AD + 5 + kc), 32 * 10240, v(AD + kc))
    A('s_branch', 'K3_ADONE')
    A.label('K3_AQ0')
    A('s_movk_i32', s(8), 13108)
    A('s_movk_i32', s(9), 10220)
    for kc in range(10):
        if kc < 5: A('v_add_u32', v(AD + kc), 64 * kc, v(1))
        else: A('v_sub_u32', v(AD + kc), 640 - 64 * kc, v(1))
        A('v_mul_u32_u24', v(2), s(8), v(AD + kc))
        A('v_lshrrev_b32', v(2), 16, v(2))
        A('v_mul_u32_u24', v(2), s(9), v(2))
        A('v_lshl_add_u32', v(AD + kc), v(AD + kc), 2, v(2))
        if kc == 5:
            A('v_cmp_eq_u32', 'vcc', 0, v(1))
            A('v_cndmask_b32', v(AD + kc), v(AD + kc), 0, 'vcc')
        if kc >= 5: A('v_add_u32', v(AD + kc), 20, v(AD + kc))
    A.label('K3_ADONE')
    A.reset_hist()
    after_ptrs(A, 3, 256)
    Z = 8
    for kc in range(10): A('buffer_load_dword', v(Z + kc), v(AD + kc), s(44, 4), s(7), mods="offen")
    srd(A, 48, P_X, 2048 * 1280)
    srd(A, 52, P_BWR, 1280)
    srd(A, 64, P_OUT, 2048 * 1280)
    A('s_load_dwordx2', s(8, 2), s(P_WS, 2), WS_SCAL)
    X, WR = 30, 36
    GA, SB, C1, GB = 42, 52, 62, 72
    IR, II, TW1, CA = 84, 88, 92, 100
    TW2 = 108
    VN, VG = 4, 7
    A('v_and_b32', v(VN), 15, v(1))
    A('v_lshrrev_b32', v(VG), 4, v(1))
    A('s_cmp_ge_u32', s(3), 5)
    A('s_cbranch_scc1', 'K3_L1')
    srd_table(A, 56)
    A('v_lshlrev_b32', v(2), 4, v(1))
    tloads(A, IR, ['IR', 'II', 'TW3R', 'TW3I', 'CA0', 'CA1'], 2, 56, 7)
    A.label('K3_L1')
    A.reset_hist()
    load5(A, X, 5, 48, s(6))
    A('s_movk_i32', s(7), 2560 * 2)
    load10(A, GA, 6, 44, s(7), WS_MOD)
    load10(A, SB, 6, 44, s(7), WS_MOD + 2560)
    A('s_movk_i32', s(7), 2560 * 4)
    load10(A, C1, 6, 44, s(7), WS_MOD)
    load10(A, GB, 6, 44, s(7), WS_MOD + 2560)
    load5(A, WR, 5, 52, 0)
    A('s_cmp_ge_u32', s(3), 4)
    A('s_cselect_b32', s(10), -1.0, 1.0)
    for k2 in range(5):
        A('s_mov_b32', s(74 + k2), fhex(E0[k2] / 640.0))
        A('s_cmov_b32', s(74 + k2), fhex(E1[k2] / 640.0))
    A('s_cselect_b32', s(13), 5 * 1280, 0)
    A('s_mov_b32', s(12), fhex(1 / math.sqrt(10)))
    A('s_mul_i32', s(7), s(4), s(11))
    A('v_cvt_f32_u32', v(20), v(1))
    A('v_cvt_f32_u32', v(21), s(7))
    A('v_mul_f32', v(21), fhex(1 / 2048.0), v(21))
    for k2 in range(5): A('v_fma_f32', v(22 + k2), v(20), s(74 + k2), v(21))
    for k2 in range(5):
        A('v_cos_f32', v(TW2 + 2 * k2), v(22 + k2))
        A('v_sin_f32', v(TW2 + 2 * k2 + 1), v(22 + k2))
    for k2 in range(5): A('v_pk_mul_f32', v(TW2 + 2 * k2, 2), v(TW2 + 2 * k2, 2), s(12, 2), mods="op_sel_hi:[1,0]")
    A('v_and_b32', v(20), 3, v(1))
    A('v_mul_u32_u24', v(20), 80, v(20))
    A('v_and_b32', v(21), 60, v(1))
    A('s_mul_i32', s(7), s(11), 320)
    A('v_add3_u32', v(20), v(20), v(21), s(7))
    A('v_add_u32', v(2), s(13), v(20))
    A('v_subrev_u32', v(3), s(13), v(20))
    dft5_consts(A, 70, 72)
    A('v_mul_u32_u24', v(20), 80, v(VN))
    A('v_lshl_add_u32', v(20), v(VG), 4, v(20))
    A('s_mul_i32', s(13), s(3), 2560)
    A('v_add_u32', v(6), s(13), v(20))
    A('v_mul_u32_u24', v(20), 20, v(VN))
    A('s_movk_i32', s(13), 320)
    A('v_mad_u32_u24', v(20), v(VG), s(13), v(20))
    A('s_lshl_b32', s(13), s(3), 2)
    A('v_add_u32', v(7), s(13), v(20))
    A('s_mul_i32', s(13), s(3), 1280)
    A('s_add_u32', s(13), s(13), L3_Y)
    A('v_add_u32', v(4), s(13), v(5))
    stamp(A, 1)
    A('s_waitcnt', 'vmcnt(16)')
    stamp(A, 2)
    U, OUT, TMP = 18, 118, 8
    for e2 in range(5):
        a, b = v(Z + (2 * e2) % 10), v(Z + (5 + 2 * e2) % 10)
        A('v_fma_mix_f32', v(U + 2 * e2), b, s(10), a, mods="op_sel_hi:[1,0,1]")
        A('v_fma_mix_f32', v(U + 2 * e2 + 1), b, s(10), a, mods="op_sel:[1,0,1] op_sel_hi:[1,0,1]")
    dft5(A, [U + 2 * i for i in range(5)], [OUT + 2 * i for i in range(5)], [8, 10, 12, 14, 16, 28], 70, 72, True)
    for k2 in range(5): cmul1(A, U + 2 * k2, OUT + 2 * k2, TW2 + 2 * k2)
    for k2 in range(5): cmul2(A, U + 2 * k2, OUT + 2 * k2, TW2 + 2 * k2, U + 2 * k2)
    for k2 in range(5): A('v_cvt_pk_f16_f32', v(Z + k2), v(U + 2 * k2), v(U + 2 * k2 + 1))
    A('ds_write2st64_b32', v(2), v(Z + 0), v(Z + 2), mods="offset0:0 offset1:10")
    A('ds_write2st64_b32', v(3), v(Z + 1), v(Z + 3), mods="offset0:30 offset1:40")
    A('ds_write_b32', v(2), v(Z + 4), mods=f"offset:{4*1280}")
    A('s_waitcnt', 'lgkmcnt(0)')
    stamp(A, 3)
    A('s_barrier')
    stamp(A, 4)
    A('s_cmp_ge_u32', s(3), 5)
    A('s_cbranch_scc1', 'K3_P2E')
    OPD, D, O = 8, 108, 16
    A('ds_read_b128', v(OPD, 4), v(6))
    A('ds_read_b128', v(OPD + 4, 4), v(6), mods="offset:1280")
    for tl in range(2):
        A('s_waitcnt', f'lgkmcnt({1-tl})')
        A('v_mfma_f32_16x16x32_f16', v(D + 8 * tl, 4), v(OPD + 4 * tl, 4), v(IR, 4), 0)
        A('v_mfma_f32_16x16x32_f16', v(D + 8 * tl + 4, 4), v(OPD + 4 * tl, 4), v(II, 4), 0)
    for tl in range(2):
        cmul_quads(A, O, O + 4, D + 8 * tl, D + 8 * tl + 4, TW1, TW1 + 4)
        for i in range(4): A('v_cvt_pk_f16_f32', v(OPD + 4 * tl + i), v(O + i), v(O + 4 + i))
        for mu in range(2):
            A('v_mfma_f32_16x16x32_f16', v(D + 8 * tl + 4 * mu, 4), v(CA + 4 * mu, 4), v(OPD + 4 * tl, 4), 0)
    for t in range(8): A('v_cvt_pk_bf16_f32', v(O + t), v(D + t), v(D + 8 + t))
    for t in range(0, 8, 2):
        A('ds_write2st64_b32', v(7), v(O + t), v(O + t + 1), mods=f"offset0:{50+5*t} offset1:{55+5*t}")
    A.label('K3_P2E')
    A.reset_hist()
    XF, WF = 84, 94
    A('s_waitcnt', 'vmcnt(0) lgkmcnt(0)')
    unpack(A, XF, X, 5)
    unpack(A, WF, WR, 5)
    A('s_add_u32', s(8), s(8), s(9))
    A('s_sub_u32', s(8), s(8), 254)
    for r in range(10): A('v_ldexp_f32', v(GA + r), v(GA + r), s(8))
    stamp(A, 5)
    A('s_barrier')
    stamp(A, 6)
    YP = 8
    A('ds_read2_b32', v(YP, 2), v(4), mods="offset0:0 offset1:1")
    A('ds_read2_b32', v(YP + 2, 2), v(4), mods="offset0:2 offset1:3")
    A('ds_read_b32', v(YP + 4), v(4), mods="offset:16")
    A('s_waitcnt', 'lgkmcnt(0)')
    T = 104
    unpack(A, T, YP, 5)
    for p in range(5): A('v_pk_mul_f32', v(T + 2 * p, 2), v(T + 2 * p, 2), v(GA + 2 * p, 2))
    for r in range(10): rnd(A, T + r, T + r)
    for p in range(5): A('v_pk_add_f32', v(T + 2 * p, 2), v(T + 2 * p, 2), v(XF + 2 * p, 2))
    X1P = 8
    for p in range(5): A('v_cvt_pk_bf16_f32', v(X1P + p), v(T + 2 * p), v(T + 2 * p + 1))
    unpack(A, XF, X1P, 5)
    A('s_add_u32', s(7), s(6), WS_X1)
    store5(A, X1P, 5, 44, s(7))
    ln_stats(A, XF, T, 16, 17, 12)
    A('v_readlane_b32', s(12), v(16), 63)
    A('v_readlane_b32', s(13), v(17), 63)
    H = 104
    h_chain(A, XF, H, 12, C1, SB)
    for r in range(10): rnd(A, H + r, H + r)
    A('v_pk_mul_f32', v(20, 2), v(H, 2), v(WF, 2))
    A('v_pk_mul_f32', v(22, 2), v(H + 2, 2), v(WF + 2, 2))
    A('v_pk_fma_f32', v(20, 2), v(H + 4, 2), v(WF + 4, 2), v(20, 2))
    A('v_pk_fma_f32', v(22, 2), v(H + 6, 2), v(WF + 6, 2), v(22, 2))
    A('v_pk_fma_f32', v(20, 2), v(H + 8, 2), v(WF + 8, 2), v(20, 2))
    A('v_pk_add_f32', v(20, 2), v(20, 2), v(22, 2))
    A('v_add_f32', v(18), v(20), v(21))
    for p in range(5): A('v_pk_mul_f32', v(H + 2 * p, 2), v(H + 2 * p, 2), v(GB + 2 * p, 2))
    for r in range(10): rnd(A, H + r, H + r)
    for p in range(5): A('v_pk_add_f32', v(H + 2 * p, 2), v(H + 2 * p, 2), v(XF + 2 * p, 2))
    for p in range(5): A('v_cvt_pk_bf16_f32', v(24 + p), v(H + 2 * p), v(H + 2 * p + 1))
    store5(A, 24, 5, 64, s(6))
    reduce63(A, 'v_add_f32', [18])
    rnd(A, 18, 18)
    A('v_ashrrev_i32', v(19), 31, v(18))
    A('v_or_b32', v(19), '0x80000000', v(19))
    A('v_xor_b32', v(18), v(18), v(19))
    A('v_and_b32', v(18), '0xffff0000', v(18))
    A('s_sub_u32', s(7), 2047, s(5))
    A('v_or_b32', v(18), s(7), v(18))
    A('v_cmp_eq_u32', 'vcc', 63, v(1))
    A('s_mov_b64', 'exec', 'vcc')
    A('v_mov_b32', v(19), 0)
    A('s_lshl_b32', s(7), s(5), 2)
    A('s_add_u32', s(7), s(7), WS_KEY)
    A('buffer_store_dword', v(18), v(19), s(44, 4), s(7), mods="offen")
    A('s_lshl_b32', s(7), s(5), 3)
    A('s_add_u32', s(7), s(7), WS_STAT2)
    A('buffer_store_dwordx2', v(16, 2), v(19), s(44, 4), s(7), mods="offen")
    epilogue(A, 3, 256, 8)
    finish(A, 'k3_kernel', total, 512, max(L3_Y + 10240, roles.ROLE_LDS))

def gen_all():
    gen_k1(); gen_k2(); gen_k3()
```

```python
from common import *
import roles
from k123 import prologue, after_ptrs, epilogue, SHADOW

L4_H, L4_C, L4_P = 0, 10368, 10752

def gen_k4():
    A = Asm()
    total = prologue(A, 4, 256)
    A('s_and_b32', s(4), s(2), 7)
    A('s_lshr_b32', s(5), s(2), 6)
    A('s_lshl_b32', s(5), s(5), 3)
    A('s_add_u32', s(4), s(4), s(5))
    A('s_lshr_b32', s(5), s(2), 3)
    A('s_and_b32', s(5), s(5), 7)
    A('s_lshl_b32', s(6), s(4), 6)
    A('s_lshl_b32', s(5), s(5), 3)
    A('s_add_u32', s(6), s(6), s(5))
    VN, VG = 3, 4
    A('v_and_b32', v(VN), 15, v(1))
    A('v_lshrrev_b32', v(VG), 4, v(1))
    A('v_lshlrev_b32', v(5), 4, v(0))
    A('v_mul_u32_u24', v(6), 20, v(1))
    A('v_lshlrev_b32', v(7), 1, v(6))
    A('v_and_b32', v(11), 7, v(VN))
    A('v_lshrrev_b32', v(8), 3, v(VN))
    A('s_movk_i32', s(5), 1280)
    A('v_mul_u32_u24', v(10), s(5), v(11))
    A('v_lshl_add_u32', v(10), v(VG), 4, v(10))
    A('s_mov_b32', s(5), WS_UT - WS_GT)
    A('v_mad_u32_u24', v(10), v(8), s(5), v(10))
    after_ptrs(A, 4, 256)
    A('s_cmp_ge_u32', s(4), 27)
    A('s_cbranch_scc1', 'K4_EXIT')
    KEY = 12
    A('s_mov_b32', s(7), WS_KEY)
    A('buffer_load_dwordx4', v(KEY, 4), v(5), s(44, 4), s(7), mods="offen")
    SB, C1, W = 32, 42, 16
    A('s_movk_i32', s(7), 2560 * 3)
    load10(A, SB, 7, 44, s(7), WS_MOD)
    load10(A, C1, 7, 44, s(7), WS_MOD + 2560)
    A('s_mul_i32', s(7), s(6), 1280)
    A('s_lshl_b32', s(8), s(3), 8)
    A('s_add_u32', s(7), s(7), s(8))
    A('s_add_u32', s(7), s(7), WS_GT)
    A('s_cmp_ge_u32', s(3), 5)
    A('s_cbranch_scc1', 'K4_NOW')
    for kk in range(4): A('buffer_load_dwordx4', v(W + 4 * kk, 4), v(10), s(44, 4), s(7), mods=f"offen offset:{64*kk}")
    A('s_waitcnt', 'vmcnt(10)')
    A.label('K4_NOW')
    A.reset_hist()
    A('s_movk_i32', s(7), 1296)
    A('v_mul_u32_u24', v(52), s(7), v(11))
    A('v_lshl_add_u32', v(52), v(VG), 4, v(52))
    A('v_add_u32', v(52), s(8), v(52))
    A('v_lshlrev_b32', v(9), 8, v(VG))
    A('v_lshl_add_u32', v(9), v(VN), 2, v(9))
    A('s_lshl_b32', s(7), s(3), 9)
    A('s_add_u32', s(7), s(7), L4_P)
    A('v_add_u32', v(53), s(7), v(9))
    stamp(A, 1)
    A('s_cmp_lt_u32', s(3), 5)
    A('s_cbranch_scc1', 'K4_W1')
    A('s_waitcnt', 'vmcnt(6)')
    A.label('K4_W1')
    A.reset_hist()
    stamp(A, 2)
    A('s_mov_b32', s(9), 0)
    for r in range(8):
        A('v_max3_u32', v(9), v(KEY), v(KEY + 1), v(KEY + 2))
        A('v_max_u32', v(9), v(9), v(KEY + 3))
        reduce63(A, 'v_max_u32', [9])
        A('v_readlane_b32', s(10), v(9), 63)
        if r < 7:
            for i in range(4): A('v_subrev_u32', v(KEY + i), s(10), v(KEY + i))
        A('s_add_u32', s(9), s(9), s(10))
        A('v_writelane_b32', v(54), s(9), r)
    A('s_lshl_b32', s(7), s(3), 5)
    A('v_lshl_add_u32', v(9), v(1), 2, s(7))
    A('s_mov_b64', 'exec', '0xff')
    A('ds_write_b32', v(9), v(54), mods=f"offset:{L4_C}")
    A('s_mov_b64', 'exec', -1)
    A('v_lshlrev_b32', v(9), 2, v(1))
    A('s_waitcnt', 'lgkmcnt(0)')
    stamp(A, 3)
    A('s_barrier')
    A('ds_read_b32', v(KEY), v(9), mods=f"offset:{L4_C}")
    A('s_mov_b32', s(9), 0)
    A('s_waitcnt', 'lgkmcnt(0)')
    for r in range(8):
        A('v_mov_b32', v(9), v(KEY))
        reduce63(A, 'v_max_u32', [9])
        A('v_readlane_b32', s(10), v(9), 63)
        A('s_add_u32', s(9), s(9), s(10))
        if r < 7:
            A('s_cmp_eq_u32', s(3), r)
            A('s_cbranch_scc1', 'K4_GOT')
            A('v_subrev_u32', v(KEY), s(10), v(KEY))
    A.label('K4_GOT')
    A.reset_hist()
    A('s_and_b32', s(10), s(9), 2047)
    A('s_sub_u32', s(10), 2047, s(10))
    A('s_lshl_b32', s(11), s(10), 3)
    A('s_add_u32', s(11), s(11), WS_STAT2)
    A('s_load_dwordx2', s(12, 2), s(P_WS, 2), s(11))
    A('s_mul_i32', s(11), s(10), 1280)
    A('s_add_u32', s(11), s(11), WS_X1)
    XF, H = 56, 66
    load5(A, 76, 6, 44, s(11))
    A('s_cmp_lg_u32', s(2), 0)
    A('s_cbranch_scc1', 'K4_NOSEL')
    A('s_lshr_b32', s(11), s(9), 31)
    A('s_sub_u32', s(11), s(11), 1)
    A('s_or_b32', s(11), s(11), '0x80000000')
    A('s_xor_b32', s(11), s(11), s(9))
    A('s_and_b32', s(11), s(11), '0xffff0000')
    A('v_mov_b32', v(12), s(10))
    A('v_mov_b32', v(13), s(11))
    A('v_mov_b32', v(9), 0)
    A('s_lshl_b32', s(11), s(3), 3)
    A('s_add_u32', s(11), s(11), WS_SEL)
    A('buffer_store_dwordx2', v(12, 2), v(9), s(44, 4), s(11), mods="offen")
    A.label('K4_NOSEL')
    A.reset_hist()
    A('s_mul_i32', s(11), s(3), 1296)
    A('v_add_u32', v(9), s(11), v(6))
    stamp(A, 4)
    A('s_waitcnt', 'vmcnt(0) lgkmcnt(0)')
    stamp(A, 5)
    unpack(A, XF, 76, 5)
    h_chain(A, XF, H, 12, C1, SB)
    for p in range(5): A('v_cvt_pk_bf16_f32', v(76 + p), v(H + 2 * p), v(H + 2 * p + 1))
    A('ds_write2_b32', v(9), v(76), v(77), mods="offset0:0 offset1:1")
    A('ds_write2_b32', v(9), v(78), v(79), mods="offset0:2 offset1:3")
    A('ds_write_b32', v(9), v(80), mods="offset:16")
    A('s_waitcnt', 'lgkmcnt(0)')
    stamp(A, 6)
    A('s_barrier')
    A('s_cmp_ge_u32', s(3), 5)
    A('s_cbranch_scc1', 'K4_END')
    for kk in range(4): A('ds_read_b128', v(56 + 4 * kk, 4), v(52), mods=f"offset:{64*kk}")
    ACC = 72
    for kk in range(4):
        A('s_waitcnt', f'lgkmcnt({3-kk})')
        A('v_mfma_f32_16x16x32_bf16', v(ACC + 4 * (kk & 1), 4), v(56 + 4 * kk, 4), v(W + 4 * kk, 4), v(ACC + 4 * (kk & 1), 4) if kk >= 2 else 0)
    for h in (0, 2): A('v_pk_add_f32', v(ACC + h, 2), v(ACC + h, 2), v(ACC + 4 + h, 2))
    A('s_mov_b64', 'exec', '0xffffffff')
    A('ds_write2_b32', v(53), v(ACC), v(ACC + 1), mods="offset0:0 offset1:16")
    A('ds_write2_b32', v(53), v(ACC + 2), v(ACC + 3), mods="offset0:32 offset1:48")
    A('s_mov_b64', 'exec', -1)
    A('v_lshrrev_b32', v(10), 3, v(1))
    A('v_and_b32', v(11), 7, v(1))
    A('v_lshlrev_b32', v(9), 6, v(10))
    A('v_lshl_add_u32', v(9), v(11), 2, v(9))
    A('v_add_u32', v(9), L4_P, v(9))
    A('v_add_u32', v(8), 1024, v(9))
    A('s_waitcnt', 'lgkmcnt(0)')
    A('s_barrier')
    A('s_cmp_lg_u32', s(3), 0)
    A('s_cbranch_scc1', 'K4_END')
    P = 16
    A('ds_read2_b32', v(P, 2), v(9), mods="offset0:0 offset1:8")
    A('ds_read2_b32', v(P + 2, 2), v(9), mods="offset0:128 offset1:136")
    A('ds_read2_b32', v(P + 4, 2), v(8), mods="offset0:0 offset1:8")
    A('ds_read2_b32', v(P + 6, 2), v(8), mods="offset0:128 offset1:136")
    A('v_add_u32', v(8), 1024, v(8))
    A('ds_read2_b32', v(P + 8, 2), v(8), mods="offset0:0 offset1:8")
    A('s_movk_i32', s(5), 3456)
    A('v_mul_u32_u24', v(10), s(5), v(10))
    A('v_lshl_add_u32', v(10), v(11), 1, v(10))
    A('s_lshl_b32', s(7), s(6), 1)
    A('s_add_u32', s(7), s(7), WS_A)
    A('s_waitcnt', 'lgkmcnt(0)')
    A('v_pk_add_f32', v(P, 2), v(P, 2), v(P + 2, 2))
    A('v_pk_add_f32', v(P + 4, 2), v(P + 4, 2), v(P + 6, 2))
    A('v_pk_add_f32', v(P, 2), v(P, 2), v(P + 8, 2))
    A('v_pk_add_f32', v(P, 2), v(P, 2), v(P + 4, 2))
    rnd(A, P, P); rnd(A, P + 1, P + 1)
    A('v_mul_f32', v(12), fhex(-LOG2E), v(P))
    A('v_exp_f32', v(12), v(12))
    A('v_add_f32', v(12), 1.0, v(12))
    A('v_rcp_f32', v(12), v(12))
    A('v_mul_f32', v(12), v(12), v(P))
    rnd(A, 12, 12)
    A('v_mul_f32', v(12), v(12), v(P + 1))
    rnd(A, 12, 12)
    A('buffer_store_short_d16_hi', v(12), v(10), s(44, 4), s(7), mods="offen")
    epilogue(A, 4, 256, 8)
    finish(A, 'k4_kernel', total, 512, max(L4_P + 2560, roles.ROLE_LDS if SHADOW[4] else 0))

def gen_k5():
    A = Asm()
    total = prologue(A, 5, 128)
    A('s_add_u32', s(4), s(2), 5)
    A('s_and_b32', s(4), s(4), 7)
    A('s_lshr_b32', s(5), s(2), 6)
    A('s_lshl_b32', s(5), s(5), 3)
    A('s_add_u32', s(4), s(4), s(5))
    A('s_cmp_ge_u32', s(4), 10)
    A('s_cbranch_scc1', 'K5_EXIT')
    A('s_lshr_b32', s(5), s(2), 3)
    A('s_and_b32', s(5), s(5), 7)
    A('s_lshl_b32', s(4), s(4), 6)
    A('s_lshl_b32', s(5), s(5), 3)
    A('s_add_u32', s(4), s(4), s(5))
    VN, VG = 3, 4
    A('v_and_b32', v(VN), 15, v(1))
    A('v_lshrrev_b32', v(VG), 4, v(1))
    A('v_lshrrev_b32', v(8), 3, v(VN))
    A('v_and_b32', v(11), 7, v(VN))
    A('s_movk_i32', s(5), 3456)
    A('v_mul_u32_u24', v(5), s(5), v(11))
    A('v_lshl_add_u32', v(5), v(VG), 4, v(5))
    A('s_movk_i32', s(5), 192)
    A('v_mad_u32_u24', v(5), v(8), s(5), v(5))
    A('v_lshrrev_b32', v(6), 3, v(1))
    A('v_lshlrev_b32', v(6), 3, v(6))
    A('s_mul_i32', s(6), s(3), 384)
    after_ptrs(A, 5, 128)
    srd(A, 56, P_OUT, 2048 * 1280)
    SEL, AO, W = 12, 16, 28
    A('s_mov_b32', s(7), WS_SEL)
    A('buffer_load_dwordx2', v(SEL, 2), v(6), s(44, 4), s(7), mods="offen")
    A('s_add_u32', s(7), s(6), WS_A)
    for dc in range(3): A('buffer_load_dwordx4', v(AO + 4 * dc, 4), v(5), s(44, 4), s(7), mods=f"offen offset:{64*dc}")
    A('s_mul_i32', s(7), s(4), 3456)
    A('s_add_u32', s(7), s(7), s(6))
    A('s_add_u32', s(7), s(7), WS_DT)
    for dc in range(3): A('buffer_load_dwordx4', v(W + 4 * dc, 4), v(5), s(44, 4), s(7), mods=f"offen offset:{64*dc}")
    A('v_and_b32', v(9), 1, v(VG))
    A('v_lshlrev_b32', v(9), 7, v(9))
    A('v_lshl_add_u32', v(9), v(8), 8, v(9))
    A('v_lshl_add_u32', v(9), v(11), 2, v(9))
    A('s_lshl_b32', s(7), s(3), 9)
    A('v_add_u32', v(7), s(7), v(9))
    A('v_lshrrev_b32', v(9), 1, v(VG))
    A('v_cmp_eq_u32', s(14, 2), v(9), v(8))
    stamp(A, 1)
    A('s_cmp_lg_u32', s(3), 0)
    A('s_cbranch_scc1', 'K5_MM')
    E = 48
    A('v_and_b32', v(9), 7, v(1))
    A('v_add_u32', v(9), s(4), v(9))
    A('v_lshlrev_b32', v(6), 2, v(9))
    A('s_movk_i32', s(7), 2560 * 3)
    A('buffer_load_dword', v(E + 4), v(6), s(44, 4), s(7), mods=f"offen offset:{WS_MOD}")
    A('buffer_load_dword', v(E + 5), v(6), s(44, 4), s(7), mods=f"offen offset:{WS_MOD + 2560}")
    A('s_movk_i32', s(7), 2560 * 5)
    A('buffer_load_dword', v(E + 6), v(6), s(44, 4), s(7), mods=f"offen offset:{WS_MOD}")
    A('s_waitcnt', 'vmcnt(9)')
    A('v_and_b32', v(SEL), 2047, v(SEL))
    A('s_movk_i32', s(5), 1280)
    A('v_mul_u32_u24', v(6), s(5), v(SEL))
    A('v_lshl_add_u32', v(6), v(9), 1, v(6))
    A('v_lshlrev_b32', v(9), 3, v(SEL))
    A('s_mov_b32', s(7), WS_X1)
    A('buffer_load_ushort', v(E), v(6), s(44, 4), s(7), mods="offen")
    A('s_mov_b32', s(7), WS_STAT2)
    A('buffer_load_dwordx2', v(E + 2, 2), v(9), s(44, 4), s(7), mods="offen")
    A('v_mul_f32', v(SEL + 1), fhex(-LOG2E), v(SEL + 1))
    A('v_exp_f32', v(SEL + 1), v(SEL + 1))
    A('v_add_f32', v(SEL + 1), 1.0, v(SEL + 1))
    A('v_rcp_f32', v(SEL + 1), v(SEL + 1))
    rnd(A, SEL + 1, SEL + 1)
    A('s_waitcnt', 'vmcnt(5)')
    A('s_branch', 'K5_MM2')
    A.label('K5_MM')
    A('s_waitcnt', 'vmcnt(0)')
    A.label('K5_MM2')
    A.reset_hist()
    stamp(A, 2)
    ACC = 40
    for dc in range(3):
        A('v_mfma_f32_16x16x32_bf16', v(ACC, 4), v(AO + 4 * dc, 4), v(W + 4 * dc, 4), v(ACC, 4) if dc else 0)
    A('s_mov_b64', 'exec', s(14, 2))
    A('ds_write2_b32', v(7), v(ACC), v(ACC + 1), mods="offset0:0 offset1:8")
    A('ds_write2_b32', v(7), v(ACC + 2), v(ACC + 3), mods="offset0:16 offset1:24")
    A('s_mov_b64', 'exec', -1)
    A('v_lshlrev_b32', v(9), 2, v(1))
    A('s_waitcnt', 'lgkmcnt(0)')
    stamp(A, 3)
    A('s_barrier')
    stamp(A, 4)
    A('s_cmp_lg_u32', s(3), 0)
    A('s_cbranch_scc1', 'K5_END')
    P = 16
    for u in range(9): A('ds_read2st64_b32', v(P + 2 * u, 2), v(9), mods=f"offset0:{2*u} offset1:{2*u+1}")
    A('s_waitcnt', 'vmcnt(0)')
    A('v_lshlrev_b32', v(E), 16, v(E))
    Hh = 40
    A('v_sub_f32', v(Hh), v(E), v(E + 2)); rnd(A, Hh, Hh)
    A('v_mul_f32', v(Hh), v(Hh), v(E + 3)); rnd(A, Hh, Hh)
    A('v_mul_f32', v(Hh), v(Hh), v(E + 5)); rnd(A, Hh, Hh)
    A('v_add_f32', v(Hh), v(Hh), v(E + 4)); rnd(A, Hh, Hh)
    A('s_waitcnt', 'lgkmcnt(0)')
    for u in range(4): A('v_pk_add_f32', v(P + 4 * u, 2), v(P + 4 * u, 2), v(P + 4 * u + 2, 2))
    A('v_pk_add_f32', v(P, 2), v(P, 2), v(P + 4, 2))
    A('v_pk_add_f32', v(P + 8, 2), v(P + 8, 2), v(P + 12, 2))
    A('v_pk_add_f32', v(P, 2), v(P, 2), v(P + 16, 2))
    A('v_pk_add_f32', v(P, 2), v(P, 2), v(P + 8, 2))
    A('v_add_f32', v(P), v(P), v(P + 1)); rnd(A, P, P)
    A('v_mul_f32', v(P), v(P), v(SEL + 1)); rnd(A, P, P)
    A('v_add_f32', v(P), v(P), v(Hh)); rnd(A, P, P)
    A('v_mul_f32', v(P), v(P), v(E + 6)); rnd(A, P, P)
    A('v_add_f32', v(P), v(P), v(E)); rnd(A, P, P)
    A('buffer_store_short_d16_hi', v(P), v(6), s(56, 4), 0, mods="offen")
    epilogue(A, 5, 128, 6)
    finish(A, 'k5_kernel', total, 576, 4608)

def gen_all():
    gen_k4(); gen_k5()
```

```python
from common import *
XNT = ' nt'

def role_gemvp(A, su, end, tile0, ntiles):
    A('s_cmp_ge_u32', s(su), 5 * ntiles)
    A('s_cbranch_scc1', end)
    srd(A, 48, P_WMOD, 640 * 3840 * 2)
    srd(A, 52, P_C, 1280)
    A('s_mul_i32', s(6), s(su), (65536 + ntiles - 1) // ntiles)
    A('s_lshr_b32', s(6), s(6), 16)
    A('s_mul_i32', s(7), s(6), ntiles)
    A('s_sub_u32', s(7), s(su), s(7))
    A('s_add_u32', s(7), s(7), tile0)
    A('v_lshrrev_b32', v(3), 3, v(0))
    A('v_and_b32', v(4), 7, v(0))
    A('s_movk_i32', s(4), 7680)
    A('v_mul_u32_u24', v(6), s(4), v(3))
    A('v_lshl_add_u32', v(6), v(4), 4, v(6))
    A('s_mul_i32', s(5), s(6), 128 * 7680)
    A('s_lshl_b32', s(8), s(7), 7)
    A('s_add_u32', s(5), s(5), s(8))
    A('v_lshlrev_b32', v(5), 1, v(3))
    A('s_lshl_b32', s(8), s(6), 8)
    A('buffer_load_dwordx4', v(8, 4), v(6), s(48, 4), s(5), mods="offen nt")
    A('s_add_u32', s(5), s(5), 64 * 7680)
    A('buffer_load_dwordx4', v(12, 4), v(6), s(48, 4), s(5), mods="offen nt")
    A('buffer_load_ushort', v(16), v(5), s(52, 4), s(8), mods="offen")
    A('buffer_load_ushort', v(17), v(5), s(52, 4), s(8), mods="offen offset:128")
    A('v_lshrrev_b32', v(5), 4, v(1))
    A('v_lshlrev_b32', v(5), 3, v(5))
    A('v_lshl_add_u32', v(5), v(4), 5, v(5))
    A('s_lshl_b32', s(4), s(3), 8)
    A('v_add_u32', v(5), s(4), v(5))
    A('v_lshlrev_b32', v(6), 2, v(1))
    A('s_mul_i32', s(5), s(6), 15360)
    A('s_lshl_b32', s(8), s(7), 8)
    A('s_add_u32', s(5), s(5), s(8))
    A('s_add_u32', s(5), s(5), WS_MP)
    A('s_waitcnt', 'vmcnt(0)')
    for i in range(2): A('v_lshlrev_b32', v(16 + i), 16, v(16 + i))
    for i in range(2): A('v_mul_f32', v(18 + i), fhex(-LOG2E), v(16 + i))
    for i in range(2): A('v_exp_f32', v(18 + i), v(18 + i))
    for i in range(2): A('v_add_f32', v(18 + i), 1.0, v(18 + i))
    for i in range(2): A('v_rcp_f32', v(18 + i), v(18 + i))
    for i in range(2): A('v_mul_f32', v(16 + i), v(16 + i), v(18 + i))
    for i in range(2): rnd(A, 16 + i, 16 + i)
    unpack(A, 20, 8, 8)
    for j in range(8): A('v_mul_f32', v(40 + j), v(20 + j), v(16))
    for j in range(8): A('v_fmac_f32', v(40 + j), v(28 + j), v(17))
    for j in range(4): A('v_permlane32_swap_b32', v(40 + j), v(44 + j))
    for j in range(4): A('v_add_f32', v(40 + j), v(40 + j), v(44 + j))
    for j in range(2): A('v_permlane16_swap_b32', v(40 + j), v(42 + j))
    for j in range(2): A('v_add_f32', v(40 + j), v(40 + j), v(42 + j))
    for j in range(2): A('v_add_f32_dpp', v(40 + j), v(40 + j), v(40 + j), mods="row_ror:8 row_mask:0xf bank_mask:0xf")
    A('ds_write_b64', v(5), v(40, 2))
    A('s_waitcnt', 'lgkmcnt(0)')
    A('s_barrier')
    A('s_cmp_lg_u32', s(3), 0)
    A('s_cbranch_scc1', end)
    for u in range(4): A('ds_read2st64_b32', v(8 + 2 * u, 2), v(6), mods=f"offset0:{2*u} offset1:{2*u+1}")
    A('s_waitcnt', 'lgkmcnt(0)')
    A('v_pk_add_f32', v(8, 2), v(8, 2), v(10, 2))
    A('v_pk_add_f32', v(12, 2), v(12, 2), v(14, 2))
    A('v_pk_add_f32', v(8, 2), v(8, 2), v(12, 2))
    A('v_add_f32', v(8), v(8), v(9))
    A('buffer_store_dword', v(8), v(6), s(44, 4), s(5), mods="offen")
    A('s_branch', end)

def role_modfin(A, su, end):
    A('s_cmp_ge_u32', s(su), 5)
    A('s_cbranch_scc1', end)
    A('s_lshl_b32', s(4), s(su), 9)
    A('s_add_u32', s(4), s(4), 1280)
    A('v_add_u32', v(3), s(4), v(0))
    A('v_lshlrev_b32', v(4), 2, v(3))
    A('s_mov_b32', s(5), WS_MP)
    for p in range(5):
        A('buffer_load_dword', v(8 + p), v(4), s(44, 4), s(5), mods="offen")
        if p < 4: A('s_add_u32', s(5), s(5), 15360)
    A('v_subrev_u32', v(3), 2560, v(3))
    A('v_cmp_gt_u32', 'vcc', 640, v(3))
    A('v_cndmask_b32', v(3), 0, 1.0, 'vcc')
    A('s_waitcnt', 'vmcnt(0)')
    A('v_add_f32', v(8), v(8), v(9))
    A('v_add_f32', v(10), v(10), v(11))
    A('v_add_f32', v(8), v(8), v(12))
    A('v_add_f32', v(8), v(8), v(10))
    rnd(A, 8, 8)
    A('v_add_f32', v(8), v(3), v(8))
    rnd(A, 8, 8)
    A('buffer_store_dword', v(8), v(4), s(44, 4), 0, mods=f"offen offset:{WS_MOD}")
    A('s_branch', end)

def role_stats(A, su, end):
    srd(A, 48, P_X, 2048 * 1280)
    A('s_and_b32', s(4), s(su), 7)
    A('s_lshl_b32', s(4), s(4), 5)
    A('s_lshr_b32', s(5), s(su), 3)
    A('s_add_u32', s(4), s(4), s(5))
    A('s_lshl_b32', s(5), s(3), 8)
    A('s_add_u32', s(5), s(5), s(4))
    A('s_mul_i32', s(5), s(5), 1280)
    A('v_mul_u32_u24', v(3), 20, v(1))
    A('buffer_load_dwordx4', v(8, 4), v(3), s(48, 4), s(5), mods="offen" + XNT)
    A('buffer_load_dword', v(12), v(3), s(48, 4), s(5), mods="offen offset:16" + XNT)
    A('s_lshl_b32', s(4), s(4), 3)
    A('s_add_u32', s(4), s(4), s(3))
    A('s_lshl_b32', s(4), s(4), 3)
    A('s_add_u32', s(4), s(4), WS_STAT)
    A('v_mov_b32', v(3), 0)
    A('v_cmp_eq_u32', 'vcc', 63, v(1))
    A('s_waitcnt', 'vmcnt(0)')
    unpack(A, 16, 8, 5)
    ln_stats(A, 16, 28, 44, 45, 6)
    A('s_mov_b64', 'exec', 'vcc')
    A('buffer_store_dwordx2', v(44, 2), v(3), s(44, 4), s(4), mods="offen")
    A('s_branch', end)

def role_prep(A, su, end, tag):
    srd(A, 48, P_WR, 2048 * 321 * 2)
    srd(A, 52, P_WI, 2048 * 321 * 2)
    A('s_and_b32', s(4), s(su), 7)
    A('s_lshr_b32', s(5), s(su), 3)
    A('s_and_b32', s(6), s(5), 3)
    A('s_lshr_b32', s(5), s(5), 2)
    A('s_cmp_lt_u32', s(4), 2)
    A('s_cbranch_scc1', tag + '_Q0')
    A('s_lshr_b32', s(7), s(4), 1)
    A('s_sub_u32', s(8), 8, s(7))
    A('s_bitcmp1_b32', s(4), 0)
    A('s_cselect_b32', s(7), s(8), s(7))
    A('s_cselect_b32', s(9), 255, 0)
    A('s_cselect_b32', s(10), '0x80008000', 0)
    A('s_branch', tag + '_GO')
    A.label(tag + '_Q0')
    A('s_lshr_b32', s(7), s(5), 1)
    A('s_lshl_b32', s(7), s(7), 2)
    A('s_mul_i32', s(8), s(4), 3)
    A('s_and_b32', s(9), s(5), 1)
    A('s_add_u32', s(8), s(8), s(9))
    A('s_lshl_b32', s(9), s(4), 2)
    A('s_cmp_eq_u32', s(5), 4)
    A('s_cselect_b32', s(7), s(9), s(7))
    A('s_cselect_b32', s(5), 2, s(8))
    A('s_mov_b32', s(9), 0)
    A('s_mov_b32', s(10), 0)
    A.label(tag + '_GO')
    A.reset_hist()
    A('s_lshl_b32', s(5), s(5), 6)
    A('s_and_b32', s(8), s(7), 1)
    A('s_add_u32', s(5), s(5), s(8))
    A('v_and_b32', v(3), 7, v(1))
    A('v_lshrrev_b32', v(4), 3, v(1))
    A('v_and_b32', v(5), 3, v(4))
    A('v_lshrrev_b32', v(4), 2, v(4))
    A('s_lshl_b32', s(8), s(3), 1)
    A('v_add_u32', v(4), s(8), v(4))
    A('s_lshl_b32', s(12), s(6), 6)
    A('v_lshl_add_u32', v(6), v(5), 4, v(4))
    A('v_add_u32', v(6), s(12), v(6))
    A('v_xor_b32', v(6), s(9), v(6))
    A('s_movk_i32', s(12), 642 * 8)
    A('v_mul_u32_u24', v(6), s(12), v(6))
    A('v_lshl_add_u32', v(6), v(3), 4, v(6))
    A('s_mul_i32', s(12), s(7), 642)
    A('s_lshl_b32', s(13), s(5), 1)
    A('s_add_u32', s(12), s(12), s(13))
    R0, I0 = 8, 12
    A('buffer_load_dwordx4', v(R0, 4), v(6), s(48, 4), s(12), mods="offen nt")
    A('buffer_load_dwordx4', v(I0, 4), v(6), s(52, 4), s(12), mods="offen nt")
    A('v_lshlrev_b32', v(6), 1, v(3))
    A('v_xor_b32', v(7), v(6), v(4))
    A('v_lshlrev_b32', v(5), 2, v(5))
    A('v_lshl_add_u32', v(5), v(3), 11, v(5))
    A('v_lshl_add_u32', v(7), v(7), 4, v(5))
    A('v_and_b32', v(3), 15, v(1))
    A('v_xor_b32', v(4), s(8), v(3))
    A('v_lshrrev_b32', v(5), 4, v(1))
    A('v_lshlrev_b32', v(4), 4, v(4))
    A('v_lshl_add_u32', v(4), v(5), 8, v(4))
    A('s_lshl_b32', s(11), s(3), 11)
    A('v_add_u32', v(4), s(11), v(4))
    A('v_lshlrev_b32', v(3), 4, v(3))
    A('v_lshl_add_u32', v(3), v(5), 10, v(3))
    A('s_mul_i32', s(11), s(7), 321)
    A('s_add_u32', s(11), s(11), s(5))
    A('s_lshl_b32', s(12), s(3), 3)
    A('s_add_u32', s(11), s(11), s(12))
    A('s_lshl_b32', s(11), s(11), 10)
    A('s_lshl_b32', s(12), s(6), 8)
    A('s_add_u32', s(11), s(11), s(12))
    A('s_add_u32', s(11), s(11), WS_WE)
    A('s_mov_b32', s(12), '0x05040100')
    A('s_mov_b32', s(13), '0x07060302')
    A('s_mov_b32', s(14), '0x7fff7fff')
    O = 24
    A('s_waitcnt', 'vmcnt(0)')
    for u in range(4):
        A('v_xor_b32', v(16 + u), s(10), v(I0 + u))
        A('v_perm_b32', v(O + 2 * u), v(16 + u), v(R0 + u), s(12))
        A('v_perm_b32', v(O + 2 * u + 1), v(16 + u), v(R0 + u), s(13))
        A('ds_write2st64_b32', v(7), v(O + 2 * u), v(O + 2 * u + 1), mods=f"offset0:{2*u} offset1:{2*u+1}")
    for u in range(8): A('v_and_b32', v(R0 + u), s(14), v(R0 + u))
    for u in range(4): A('v_pk_max_u16', v(R0 + u), v(R0 + u), v(R0 + 4 + u))
    for u in range(2): A('v_pk_max_u16', v(R0 + u), v(R0 + u), v(R0 + 2 + u))
    A('v_pk_max_u16', v(40), v(R0), v(R0 + 1))
    A('v_lshrrev_b32', v(41), 16, v(40))
    A('v_and_b32', v(40), '0xffff', v(40))
    A('v_max_u32', v(40), v(40), v(41))
    reduce63(A, 'v_max_u32', [40])
    A('v_mov_b32', v(41), 16384)
    A('v_readlane_b32', s(4), v(40), 63)
    A('s_lshl_b32', s(12), s(3), 2)
    A('v_mov_b32', v(40), s(4))
    A('v_add_u32', v(41), s(12), v(41))
    A('ds_write_b32', v(41), v(40))
    A('s_waitcnt', 'lgkmcnt(0)')
    A('s_barrier')
    for n in range(2): A('ds_read_b128', v(8 + 4 * n, 4), v(4), mods=f"offset:{1024*n}")
    A('v_mov_b32', v(41), 16384)
    A('ds_read_b128', v(16, 4), v(41))
    A('ds_read_b128', v(20, 4), v(41), mods="offset:16")
    A('s_add_u32', s(12), s(11), 4096)
    for n in range(2):
        A('s_waitcnt', f'lgkmcnt({3-n})')
        A('buffer_store_dwordx4', v(8 + 4 * n, 4), v(3), s(44, 4), s(11 + n), mods="offen sc1")
    A('s_cmp_lg_u32', s(3), 0)
    A('s_cbranch_scc1', end)
    A('s_waitcnt', 'lgkmcnt(0)')
    A('v_max3_u32', v(16), v(16), v(17), v(18))
    A('v_max3_u32', v(20), v(20), v(21), v(22))
    A('v_max3_u32', v(16), v(16), v(19), v(23))
    A('v_max_u32', v(16), v(16), v(20))
    A('s_lshl_b32', s(12), s(su), 2)
    A('s_add_u32', s(12), s(12), WS_MAXW)
    A('v_mov_b32', v(41), 0)
    A('buffer_store_dword', v(16), v(41), s(44, 4), s(12), mods="offen")
    A('s_branch', end)

def role_tblpf(A, su, end):
    srd_table(A, 56)
    A('v_lshlrev_b32', v(3), 4, v(0))
    A('buffer_load_dwordx4', v(40, 4), v(3), s(56, 4), 0, mods="offen")
    A('s_movk_i32', s(4), 8192)
    A('buffer_load_dwordx4', v(44, 4), v(3), s(56, 4), s(4), mods="offen")
    A('s_movk_i32', s(4), 16384)
    A('buffer_load_dwordx4', v(48, 4), v(3), s(56, 4), s(4), mods="offen")
    A('s_branch', end)

def role_special(A, su, end, tag):
    A('s_cmp_lg_u32', s(3), 0)
    A('s_cbranch_scc1', end)
    srd(A, 48, P_WR, 2048 * 321 * 2)
    srd(A, 52, P_WI, 2048 * 321 * 2)
    A('s_lshr_b32', s(6), s(su), 2)
    A('s_and_b32', s(7), s(su), 3)
    A('s_cmp_ge_u32', s(6), 5)
    A('s_cselect_b32', s(4), 640, 0)
    A('s_cselect_b32', s(8), 5, 0)
    A('s_sub_u32', s(8), s(6), s(8))
    A('s_lshl_b32', s(9), s(7), 7)
    A('s_add_u32', s(8), s(8), s(9))
    A('v_and_b32', v(3), 15, v(1))
    A('v_lshrrev_b32', v(4), 4, v(1))
    A('v_lshl_add_u32', v(3), v(4), 6, v(3))
    A('v_lshl_add_u32', v(4), v(3), 3, s(8))
    A('s_movk_i32', s(5), 642)
    A('v_sub_u32', v(5), 2048, v(4))
    A('v_and_b32', v(5), 2047, v(5))
    A('v_mul_u32_u24', v(4), s(5), v(4))
    A('v_mul_u32_u24', v(5), s(5), v(5))
    A('buffer_load_ushort', v(8), v(4), s(48, 4), s(4), mods="offen")
    A('buffer_load_ushort', v(9), v(4), s(52, 4), s(4), mods="offen")
    A('buffer_load_ushort', v(10), v(5), s(48, 4), s(4), mods="offen")
    A('buffer_load_ushort', v(11), v(5), s(52, 4), s(4), mods="offen")
    A('s_lshl_b32', s(5), s(6), 11)
    A('s_lshl_b32', s(7), s(7), 2)
    A('s_add_u32', s(5), s(5), s(7))
    A('s_add_u32', s(5), s(5), WS_WSP)
    A('s_lshl_b32', s(4), s(su), 2)
    A('s_add_u32', s(4), s(4), WS_MAXW + 640)
    A('v_lshlrev_b32', v(3), 5, v(1))
    A('s_waitcnt', 'vmcnt(0)')
    for r in range(4): A('v_and_b32', v(12 + r), '0x7fff', v(8 + r))
    for r in range(4): A('v_lshlrev_b32', v(8 + r), 16, v(8 + r))
    A('v_max3_u32', v(6), v(12), v(13), v(14))
    A('v_max_u32', v(6), v(6), v(15))
    A('v_mul_f32', v(8), 0.5, v(8))
    A('v_mul_f32', v(9), 0.5, v(9))
    A('v_fmac_f32', v(8), 0.5, v(10))
    A('v_fmac_f32', v(9), -0.5, v(11))
    A('buffer_store_dword', v(8), v(3), s(44, 4), s(5), mods="offen")
    A('buffer_store_dword', v(9), v(3), s(44, 4), s(5), mods="offen offset:16")
    reduce63(A, 'v_max_u32', [6])
    A('v_readlane_b32', s(6), v(6), 63)
    A('v_mov_b32', v(7), 0)
    A('v_mov_b32', v(6), s(6))
    A('buffer_store_dword', v(6), v(7), s(44, 4), s(4), mods="offen")
    A('s_branch', end)

def tile_transpose(A, RS, DS, ssrc, sdst, lds_base):
    A('v_and_b32', v(3), 7, v(1))
    A('v_lshrrev_b32', v(4), 3, v(1))
    A('s_movk_i32', s(12), 8 * RS)
    A('v_mul_u32_u24', v(5), s(12), v(4))
    A('v_lshl_add_u32', v(5), v(3), 4, v(5))
    for r in range(8):
        A('buffer_load_dwordx4', v(8 + 4 * r, 4), v(5), s(48, 4), s(ssrc), mods="offen nt")
        if r < 7: A('s_add_u32', s(ssrc), s(ssrc), RS)
    A('s_lshl_b32', s(12), s(3), 12)
    A('s_add_u32', s(12), s(12), lds_base)
    A('v_xor_b32', v(5), v(3), v(4))
    A('v_lshlrev_b32', v(5), 4, v(5))
    A('v_lshl_add_u32', v(5), v(3), 9, v(5))
    A('v_add_u32', v(5), s(12), v(5))
    A('v_lshrrev_b32', v(6), 2, v(4))
    A('v_xor_b32', v(6), v(6), v(3))
    A('v_lshlrev_b32', v(7), 7, v(4))
    A('v_add_u32', v(7), s(12), v(7))
    for m in range(4):
        A('v_xor_b32', v(72 + m), 2 * m, v(6))
        A('v_lshl_add_u32', v(72 + m), v(72 + m), 4, v(7))
    A('v_lshrrev_b32', v(6), 2, v(4))
    A('v_and_b32', v(7), 3, v(4))
    A('v_lshl_add_u32', v(6), v(6), 3, v(7))
    A('s_movk_i32', s(12), DS)
    A('v_mul_u32_u24', v(6), s(12), v(6))
    A('v_lshl_add_u32', v(6), v(3), 4, v(6))
    A('s_mov_b32', s(12), '0x05040100')
    A('s_mov_b32', s(13), '0x07060302')
    A('s_waitcnt', 'vmcnt(0)')
    for p in range(2):
        for nn in range(4):
            n = 4 * p + nn
            for u in range(4):
                A('v_perm_b32', v(40 + 4 * nn + u), v(8 + 4 * (2 * u + 1) + (n >> 1)), v(8 + 4 * (2 * u) + (n >> 1)), s(12 + (n & 1)))
            A('ds_write_b128', v(5), v(40 + 4 * nn, 4), mods=f"offset:{128*nn}")
        A('s_waitcnt', 'lgkmcnt(0)')
        for m in range(4):
            A('ds_read_b128', v(56 + 4 * m, 4), v(72 + m), mods=f"offset:{1024*m}")
        for m in range(4):
            A('s_waitcnt', f'lgkmcnt({3-m})')
            A('buffer_store_dwordx4', v(56 + 4 * m, 4), v(6), s(44, 4), s(sdst), mods="offen sc1")
            if m < 3: A('s_add_u32', s(sdst), s(sdst), 16 * DS)
        if p == 0:
            A('s_sub_u32', s(sdst), s(sdst), 44 * DS)
            A('s_waitcnt', 'vmcnt(0)')

def role_wt_gu(A, su, end, nw, lds_base=0):
    A('s_cmp_ge_u32', s(3), nw)
    A('s_cbranch_scc1', end)
    A('s_and_b32', s(4), s(su), 7)
    A('s_lshr_b32', s(5), s(su), 3)
    A('s_mul_i32', s(5), s(5), nw)
    A('s_add_u32', s(5), s(5), s(3))
    A('s_mul_i32', s(6), s(5), 3277)
    A('s_lshr_b32', s(6), s(6), 16)
    A('s_mul_i32', s(7), s(6), 20)
    A('s_sub_u32', s(5), s(5), s(7))
    A('s_lshl_b32', s(6), s(6), 3)
    A('s_add_u32', s(4), s(4), s(6))
    A('s_cmp_ge_u32', s(4), 27)
    A('s_cbranch_scc1', end)
    A('s_cmp_ge_u32', s(5), 10)
    A('s_cselect_b32', s(48), s(P_UP), s(P_GATE))
    A('s_cselect_b32', s(49), s(P_UP + 1), s(P_GATE + 1))
    A('s_cselect_b32', s(6), 10, 0)
    A('s_cselect_b32', s(7), WS_UT - WS_GT, 0)
    A('s_mov_b32', s(50), hex(640 * 3456))
    A('s_mov_b32', s(51), '0x20000')
    A('s_sub_u32', s(5), s(5), s(6))
    A('s_mul_i32', s(8), s(5), 64 * 3456)
    A('s_lshl_b32', s(9), s(4), 7)
    A('s_add_u32', s(8), s(8), s(9))
    A('s_mul_i32', s(9), s(4), 64 * 1280)
    A('s_lshl_b32', s(5), s(5), 7)
    A('s_add_u32', s(9), s(9), s(5))
    A('s_add_u32', s(9), s(9), s(7))
    A('s_add_u32', s(9), s(9), WS_GT)
    tile_transpose(A, 3456, 1280, 8, 9, lds_base)
    A('s_branch', end)

def role_wt_d(A, su, end, nw, lds_base=0):
    A('s_cmp_ge_u32', s(3), nw)
    A('s_cbranch_scc1', end)
    A('s_add_u32', s(4), s(su), 5)
    A('s_and_b32', s(4), s(4), 7)
    A('s_lshr_b32', s(5), s(su), 3)
    A('s_mul_i32', s(5), s(5), nw)
    A('s_add_u32', s(5), s(5), s(3))
    A('s_cmp_ge_u32', s(5), 54)
    A('s_cbranch_scc1', end)
    A('s_cmp_ge_u32', s(5), 27)
    A('s_cselect_b32', s(6), 27, 0)
    A('s_cselect_b32', s(7), 8, 0)
    A('s_sub_u32', s(5), s(5), s(6))
    A('s_add_u32', s(4), s(4), s(7))
    A('s_cmp_ge_u32', s(4), 10)
    A('s_cbranch_scc1', end)
    srd(A, 48, P_DOWN, 1728 * 1280)
    A('s_mul_i32', s(8), s(5), 64 * 1280)
    A('s_lshl_b32', s(9), s(4), 7)
    A('s_add_u32', s(8), s(8), s(9))
    A('s_mul_i32', s(9), s(4), 64 * 3456)
    A('s_lshl_b32', s(5), s(5), 7)
    A('s_add_u32', s(9), s(9), s(5))
    A('s_add_u32', s(9), s(9), WS_DT)
    tile_transpose(A, 1280, 3456, 8, 9, lds_base)
    A('s_branch', end)

NW_GU, NW_D = 3, 2
ROLES = {
    'gemva': (104, lambda A, su, end, tag: role_gemvp(A, su, end, 0, 20)),
    'gemvb': (200, lambda A, su, end, tag: role_gemvp(A, su, end, 20, 40)),
    'modfin': (8, lambda A, su, end, tag: role_modfin(A, su, end)),
    'prep': (160, role_prep),
    'special': (40, role_special),
    'tblpf': (8, lambda A, su, end, tag: role_tblpf(A, su, end)),
    'stats': (256, lambda A, su, end, tag: role_stats(A, su, end)),
    'wtgu': (8 * ((80 + NW_GU - 1) // NW_GU), lambda A, su, end, tag: role_wt_gu(A, su, end, NW_GU)),
    'wtd': (8 * ((54 + NW_D - 1) // NW_D), lambda A, su, end, tag: role_wt_d(A, su, end, NW_D)),
}
ROLE_LDS = 16384 + 64

def dispatch_roles(A, names, first, end, tag):
    base = first
    labels = []
    for nm in names:
        cnt = ROLES[nm][0]
        labels.append((nm, base, cnt))
        base += cnt
    for i, (nm, b, cnt) in enumerate(labels):
        if i < len(labels) - 1:
            A('s_cmp_lt_u32', s(2), b + cnt)
            A('s_cbranch_scc1', f"{tag}_{nm}")
    order = [labels[-1]] + labels[:-1]
    for (nm, b, cnt) in order:
        A.label(f"{tag}_{nm}")
        A.reset_hist()
        A('s_sub_u32', s(15), s(2), b)
        ROLES[nm][1](A, 15, end, f"{tag}_{nm}x")
    return base

def gen_k0(names):
    A = Asm()
    load_ptrs(A)
    total = sum(ROLES[n][0] for n in names)
    A('s_cmp_ge_u32', s(2), total)
    A('s_cbranch_scc1', 'K0_EXIT')
    A('v_and_b32', v(1), 63, v(0))
    A('v_lshrrev_b32', v(2), 6, v(0))
    A('v_readfirstlane_b32', s(3), v(2))
    A('s_waitcnt', 'lgkmcnt(0)')
    stamp(A, 0)
    srd(A, 44, P_WS, WS_BYTES)
    dispatch_roles(A, names, 0, 'K0_END', 'K0')
    A.label('K0_END')
    A.reset_hist()
    stamp(A, 1)
    stamp_flush(A, 0, 2)
    A.label('K0_EXIT')
    A('s_endpgm')
    finish(A, 'k0_kernel', total, 512, ROLE_LDS)
```

```python
import sys
import common as C
from common import *
import roles, k123
if len(sys.argv) > 2 and sys.argv[2] == 'prof': Cfg.PROF = True
roles.gen_k0(['gemva', 'tblpf', 'stats'])
k123.SHADOW[1] = ['prep', 'special', 'gemvb']
k123.SHADOW[2] = ['modfin', 'wtgu']
k123.SHADOW[3] = ['wtd']
k123.gen_all()
try:
    import k45
    k45.gen_all()
except ImportError as e:
    print("partial:", e)
emit(sys.argv[1])
```
